```python
import torch

def _softmax(x, axis=-1):
    return torch.softmax(x, dim=axis)
def _gelu(x):
    return torch.nn.functional.gelu(x, approximate="tanh")
def _silu(x):
    return torch.nn.functional.silu(x)
def _sigmoid(x):
    return torch.sigmoid(x)
def _layernorm(x, axis=-1, eps=1e-5):
    m = x.mean(dim=axis, keepdim=True)
    v = x.var(dim=axis, keepdim=True, unbiased=False)
    return (x - m) / torch.sqrt(v + eps)
def _scatter_add(tgt, idx, src, axis=0):
    return tgt.clone().index_add_(axis, idx, src)
def _segment_sum(src, seg, n):
    out = torch.zeros((n,) + src.shape[1:], dtype=src.dtype)
    return out.index_add_(0, seg, src)
def _pad(x, pw):
    flat = tuple(v for pair in reversed(pw) for v in pair)
    return torch.nn.functional.pad(x, flat)

kernel_name = 'parallel_sum__mha_block_cached__glu_gated_geglu__decode'

def setup_inputs():

    _w = (lambda a: (lambda t: t.to(torch.bfloat16) if t.is_floating_point() else t)(torch.as_tensor(a)))
    def _A_setup():
        B, Sq, D = 1, 1, 1024
        H, Sk, Dh = 32, 65536, 128
        return {
            "x": _w((lambda *s: torch.randn(*s, dtype=torch.bfloat16) * 0.05)(B, Sq, D)),
            "k_cache": _w((lambda *s: torch.randn(*s, dtype=torch.bfloat16) * 3.2)(B, H, Sk, Dh)),
            "v_cache": _w((lambda *s: torch.randn(*s, dtype=torch.bfloat16) * 1.6)(B, H, Sk, Dh)),
            "wq": _w((lambda *s: torch.randn(*s, dtype=torch.bfloat16) * 3.2)(D, H * Dh) * (D ** -0.5)),
            "wo": _w((lambda *s: torch.randn(*s, dtype=torch.bfloat16) * 1.6)(H * Dh, D) * ((H * Dh) ** -0.5)),
        }
    _A_in = _A_setup()

    def _B_setup():
        B, S, Dm, Df = 1, 1, 1024, 3584
        return {
            "x": _w((lambda *s: torch.randn(*s, dtype=torch.bfloat16) * 0.05)(B, S, Dm)),
            "w_gate": _w((lambda *s: torch.randn(*s, dtype=torch.bfloat16) * 1.6)(Dm, Df) * (Dm ** -0.5)),
            "w_up": _w((lambda *s: torch.randn(*s, dtype=torch.bfloat16) * 1.6)(Dm, Df) * (Dm ** -0.5)),
            "w_down": _w((lambda *s: torch.randn(*s, dtype=torch.bfloat16) * 1.6)(Df, Dm) * (Df ** -0.5)),
        }
    _B_in = _B_setup()

    return {
        "A_x": _A_in["x"],
        "A_k_cache": _A_in["k_cache"],
        "A_v_cache": _A_in["v_cache"],
        "A_wq": _A_in["wq"],
        "A_wo": _A_in["wo"],
        "B_x": _B_in["x"],
        "B_w_gate": _B_in["w_gate"],
        "B_w_up": _B_in["w_up"],
        "B_w_down": _B_in["w_down"],
    }

def reference(A_x, A_k_cache, A_v_cache, A_wq, A_wo, B_x, B_w_gate, B_w_up, B_w_down):
    def _A_ref(x, k_cache, v_cache, wq, wo):
        B, Sq, D = x.shape
        H, Dh = 32, 128
        q = (lambda x, *d: x.permute(*d))((x @ wq).reshape(B, Sq, H, Dh), 0, 2, 1, 3)
        scores = torch.einsum("bhqd,bhkd->bhqk", q, k_cache) * (Dh ** -0.5)
        p = _softmax(scores, axis=-1)
        o = torch.einsum("bhqk,bhkd->bhqd", p, v_cache)
        return (lambda x, *d: x.permute(*d))(o, 0, 2, 1, 3).reshape(B, Sq, H * Dh) @ wo

    def _B_ref(x, w_gate, w_up, w_down):
        g = torch.einsum("bsd,df->bsf", x, w_gate)
        u = torch.einsum("bsd,df->bsf", x, w_up)
        h = _gelu(g) * u
        return torch.einsum("bsf,fd->bsd", h, w_down)

    x = A_x
    xn = _layernorm(x, axis=-1)
    return x + _A_ref(xn, A_k_cache, A_v_cache, A_wq, A_wo) + _B_ref(xn, B_w_gate, B_w_up, B_w_down)
```

```python
import sys, struct, os
KN = "parallel_sum__mha_block_cached__glu_gated_geglu__decode_kernel"
_ref = "parallel_sum__mha_block_cached__glu_gated_geglu__decode.s.ref"
HDR = open(_ref).read().split("; Override launch")[0] if os.path.exists(_ref) else ""

def f32(x):
    return "0x%08x" % struct.unpack("<I", struct.pack("<f", x))[0]

WS_EPOCH = 0
WS_HP = 0x60000
WS_XR = 0x4000
WS_CR = 0x8000
WS_QP = 0x10000
WS_GP = 0x30000
WS_AP = 0x70000
WS_FO = 0xC0000
WS_DBG = 0x200000
WS_SIZE = 0x400000
APS = 640
L_Q = 0
L_TAG = 256
L_CT = 264
L_DONE = 272
L_VF = 280
L_PUB = 288
L_MLF = 304
L_CF = 296
L_SW = 304
L_GU = 512
L_O = L_GU + 2048
L_ML = L_O + 1024
L_V = L_ML + 64
L_TS = L_V + 1024
L_S = L_TS + 1280
LDS_SIZE = L_S + 32768
POLL_MAX = 1 << 19

def gen(name, D=10, DG=16, DW=11, floc=2, gwait=3, slpQ=1, slpG=8, slpA=0, slpF=0, cpf=2, tb=3, yloc=1, yfake=0, early=0, hs=3, pre=1, WE=0, probe=None, gred=1, spoll=0, loc=None, xh=7, uj=0, gpw=0, sx=0,
        ctl=(18, 16, 114), cdn=4, cbias=28, cwait=3, cslp=16, nrec=64, bn=4, leak=5, jump=100, sl2=6, rpt=1,
        pat="wabc0g1g2A3BCDEF", gseq=1, hb=None, dbg=0, gst=1, gld=1, qst=0, qld=0, cld=0, ast=0, fst=0, qdly=0, nob0=0, DG0=None, DG1=None, jfix=0, hmap=0, pipeA=0, pslp=4, apt=0, fpt=0, ald=0, endb=None, DWa=None, gx=(0, 0), init=(425, 1710), fwait=2, adly=0, xb=0, stamps=0, smode=1, fine=0):
    if yloc:
        fwait = 1
        if gred != 2: floc = 0
    wqp, wop, sm, small, fuse, cscale, hperm = 1, 2, 1, 1, 1, 0, 0
    lseonly = pt = fdly = 0
    FL = ["sc1", "sc1 nt", "", "sc0", "nt"]
    ptm = None
    W, U = 2, 8
    N2 = 2*U
    NT = 128
    K0 = N2 - D
    L = []
    def A(s): L.append("  " + s)
    def C(s): L.append("  ; " + s)
    def LBL(s): L.append(s + ":")
    def nop(n): A(f"s_nop {n-1}")
    L.append(HDR.rstrip())
    L.append(f"; @launch grid=(256,1,1) block=({(W+1)*64},1,1) lds={LDS_SIZE}")
    L.append(DOC)
    L.append('.amdgcn_target "amdgcn-amd-amdhsa--gfx950"')
    L.append(".text"); L.append(f".globl {KN}"); L.append(".p2align 8"); L.append(f".type {KN},@function"); L.append(f"{KN}:")

    sW, sH, sS, sCUR, sSTEP = "s3", "s4", "s5", "s6", "s7"
    SRD_K, SRD_V, SRD_X, SRD_WS, SRD_A, SRD_B = 8, 12, 16, 20, 24, 28
    def srd(n): return f"s[{n}:{n+3}]"
    P_X, P_K, P_V, P_WQ, P_WO, P_WG, P_WU, P_WD, P_OUT, P_DBG, P_WS = 36, 38, 40, 42, 44, 48, 50, 52, 54, 56, 58
    sTAG, sN, sNEXT, sCNT, sBASE, sT0, sT1, sT2, sT3, sOFF, sFL = "s60", "s61", "s62", "s63", "s64", "s65", "s66", "s67", "s68", "s69", "s70"
    sFC, sFR = "s71", "s77"
    sMASK = "s[72:73]"
    sSCALE, sLOG2E, sHI = "s74", "s75", "s76"
    sPC = "s[32:33]"
    sCLK, sCLKlo = "s[34:35]", "s34"
    sST = 80
    def mk_srd(n, p, size):
        A(f"s_mov_b32 s{n}, s{p}"); A(f"s_mov_b32 s{n+1}, s{p+1}"); A(f"s_mov_b32 s{n+2}, {size}"); A(f"s_mov_b32 s{n+3}, 0x20000")
    def stamp(i, mode=1):
        if stamps and (smode == mode or i in (0, 7) or mode == 0):
            A(f"s_memrealtime s[{sST+2*i}:{sST+2*i+1}]")
    def stamp_store(n):
        if not stamps: return
        A("s_waitcnt lgkmcnt(0)")
        A(f"s_mul_i32 {sT0}, s2, {W+1}"); A(f"s_add_u32 {sT0}, {sT0}, {sW}"); A(f"s_lshl_b32 {sT0}, {sT0}, 6"); A(f"s_add_u32 {sT0}, {sT0}, {WS_DBG}")
        A("s_getreg_b32 s96, hwreg(HW_REG_XCC_ID)"); A("s_getreg_b32 s97, hwreg(HW_REG_HW_ID)")
        A("s_mov_b64 exec, 1")
        A("v_mov_b32 v1, 0")
        for i in range(n):
            A(f"v_mov_b32 v2, s{sST+2*i}")
            A(f"buffer_store_dword v2, v1, {srd(SRD_WS)}, {sT0} offen offset:{4*i}")
        A("v_mov_b32 v2, s96"); A(f"buffer_store_dword v2, v1, {srd(SRD_WS)}, {sT0} offen offset:56")
        A("v_mov_b32 v2, s97"); A(f"buffer_store_dword v2, v1, {srd(SRD_WS)}, {sT0} offen offset:60")

    vLANE, vO0, vO1, vWOFF = 0, 1, 2, 3
    vMASK = 4
    vPX = 4
    vXS = 8
    vXP = 16
    vT = 17
    vA = 24
    vD = 28
    vD2 = 32
    vQ = 36
    vP = 40
    vM, vL, vPK, vPK1, vTK, vCA, vZ, vCQ = 48, 49, 50, 51, 52, 53, 54, 55
    vR = 56
    vJ = vR + 128
    vTG, vFF, vF8, vTR = vJ + 8, vJ + 9, vJ + 10, vJ + 11
    vSM, vIX, vMID = vJ + 12, vJ + 14, vJ + 15
    vSMH, vCQH, vX4 = vJ + 16, vJ + 17, vJ + 18
    NV = vJ + 20
    vY = vR

    def dpp(op, d, a, b, ctrl, rm="0xf", bm="0xf"):
        A(f"{op}_dpp v{d}, v{a}, v{b} {ctrl} row_mask:{rm} bank_mask:{bm}")
    def row_reduce(op, v, steps=4):
        for ctrl in ("quad_perm:[1,0,3,2]", "quad_perm:[2,3,0,1]", "row_half_mirror", "row_mirror")[:steps]:
            nop(2); dpp(op, v, v, v, ctrl)
    def wave_reduce(op, v):
        row_reduce(op, v)
        nop(1)
        A(f"v_readlane_b32 {sT0}, v{v}, 0"); A(f"v_readlane_b32 {sT1}, v{v}, 16"); A(f"v_readlane_b32 {sT2}, v{v}, 32"); A(f"v_readlane_b32 {sT3}, v{v}, 48")
        nop(1)
        A(f"v_mov_b32 v{v}, {sT0}"); A(f"{op} v{v}, {sT1}, v{v}"); A(f"{op} v{v}, {sT2}, v{v}"); A(f"{op} v{v}, {sT3}, v{v}")
    def bf16r(d, s):
        A(f"v_cvt_pk_bf16_f32 v{d}, v{s}, v{s}"); A(f"v_and_b32 v{d}, {sHI}, v{d}")
    def layernorm():
        C("layernorm with the reference's bf16 roundings -> packed xn of this lane's rows")
        e = vP
        for i in range(8):
            A(f"v_lshlrev_b32 v{e+i}, 16, v{vXS+i}"); A(f"v_and_b32 v{vXS+i}, {sHI}, v{vXS+i}")
        A(f"v_add_f32 v{vT}, v{e}, v{vXS}")
        for i in range(1, 8):
            A(f"v_add_f32 v{vT+1}, v{e+i}, v{vXS+i}"); A(f"v_add_f32 v{vT}, v{vT}, v{vT+1}")
        wave_reduce("v_add_f32", vT)
        A(f"v_mul_f32 v{vT}, {f32(1/1024)}, v{vT}")
        A(f"v_mov_b32 v{vT+1}, 0")
        for i in range(8):
            A(f"v_sub_f32 v{e+i}, v{e+i}, v{vT}"); A(f"v_sub_f32 v{vXS+i}, v{vXS+i}, v{vT}")
            A(f"v_fmac_f32 v{vT+1}, v{e+i}, v{e+i}"); A(f"v_fmac_f32 v{vT+1}, v{vXS+i}, v{vXS+i}")
        wave_reduce("v_add_f32", vT+1)
        A(f"v_mul_f32 v{vT+1}, {f32(1/1024)}, v{vT+1}")
        bf16r(vT, vT); bf16r(vT+1, vT+1)
        A(f"v_add_f32 v{vT+1}, {f32(1e-5)}, v{vT+1}"); bf16r(vT+1, vT+1)
        A(f"v_sqrt_f32 v{vT+1}, v{vT+1}"); nop(1); bf16r(vT+1, vT+1)
        A(f"v_rcp_f32 v{vT+1}, v{vT+1}")
        if hs == 3:
            for k in range(2):
                A(f"v_lshlrev_b32 v{vPX+2*k}, 16, v{vX4+k}"); A(f"v_and_b32 v{vPX+2*k+1}, {sHI}, v{vX4+k}")
            for r in range(4): A(f"v_sub_f32 v{vPX+r}, v{vPX+r}, v{vT}")
            for r in range(4): bf16r(vPX+r, vPX+r)
            for r in range(4): A(f"v_mul_f32 v{vPX+r}, v{vPX+r}, v{vT+1}")
            for r in range(4): A(f"v_cvt_pk_bf16_f32 v{vPX+r}, v{vPX+r}, v{vPX+r}")
            return
        A(f"v_lshlrev_b32 v{vT+2}, 16, v{vXP}"); A(f"v_and_b32 v{vT+3}, {sHI}, v{vXP}")
        A(f"v_sub_f32 v{vT+2}, v{vT+2}, v{vT}"); A(f"v_sub_f32 v{vT+3}, v{vT+3}, v{vT}")
        bf16r(vT+2, vT+2); bf16r(vT+3, vT+3)
        A(f"v_mul_f32 v{vT+2}, v{vT+2}, v{vT+1}"); A(f"v_mul_f32 v{vT+3}, v{vT+3}, v{vT+1}")
        A(f"v_cvt_pk_bf16_f32 v{vPK}, v{vT+2}, v{vT+2}"); A(f"v_cvt_pk_bf16_f32 v{vPK1}, v{vT+3}, v{vT+3}")
    def build_A(src, pos, a=vA):
        if small:
            for r in range(2): dpp("v_and_b32", a+r, src, vSM+r, f"row_newbcast:{pos}")
            return
        for r in range(4):
            dpp("v_and_b32", a+r, src, vMASK+r, f"row_newbcast:{pos}")
    def build_AH(src, k, a):
        dpp("v_and_b32", a, src, vSMH, f"row_newbcast:{k}", bm="0x1"); dpp("v_and_b32", a+1, src, vSMH, f"row_newbcast:{k}", bm="0x2")
        dpp("v_and_b32", a, src, vSMH, f"row_newbcast:{8+k}", bm="0x4"); dpp("v_and_b32", a+1, src, vSMH, f"row_newbcast:{8+k}", bm="0x8")
    def mfma(d, b, a=vA):
        if small:
            A(f"v_smfmac_f32_16x16x32_bf16 v[{d}:{d+3}], v[{a}:{a+1}], v[{b}:{b+3}], v{vIX}")
            return
        A(f"v_mfma_f32_16x16x32_bf16 v[{d}:{d+3}], v[{a}:{a+3}], v[{b}:{b+3}], v[{d}:{d+3}]")
    def zero4(d):
        for r in range(4): A(f"v_mov_b32 v{d+r}, 0")
    def gemv(reg, maxout):
        zero4(vD)
        if sm == 1:
            As = (vA, vA+2)
            def bs(n):
                for r in range(2): dpp("v_and_b32", As[n % 2]+r, vPK + n % 2, vSM+r, f"row_newbcast:{n//2}")
            bs(0)
            for n in range(32):
                if n < 31: bs(n+1)
                else: nop(2)
                if 31 - n < maxout: A(f"s_waitcnt vmcnt({31 - n})")
                a, b = As[n % 2], reg(n)
                A(f"v_smfmac_f32_16x16x32_bf16 v[{vD}:{vD+3}], v[{a}:{a+1}], v[{b}:{b+3}], v{vIX}")
            return
        if sm == 2:
            As = (vA, vD2)
            def bs(i):
                for r in range(4): dpp("v_and_b32", As[i % 2]+r, vPK + r//2, vSM + r % 2, f"row_newbcast:{i}")
            bs(0)
            for i in range(16):
                if i < 15: bs(i+1)
                else: nop(2)
                if 30 - 2*i < maxout: A(f"s_waitcnt vmcnt({30 - 2*i})")
                a, b = As[i % 2], reg(2*i)
                assert reg(2*i+1) == b + 4
                A(f"v_smfmac_f32_16x16x64_bf16 v[{vD}:{vD+3}], v[{a}:{a+3}], v[{b}:{b+7}], v{vIX}")
            nop(4)
            return
        As = (vA, vD2)
        build_A(vPK, 0, As[0])
        for n in range(32):
            if n < 31: build_A(vPK if (n+1) % 2 == 0 else vPK1, (n+1)//2, As[(n+1) % 2])
            else: nop(2)
            if 31 - n < maxout: A(f"s_waitcnt vmcnt({31 - n})")
            mfma(vD, reg(n), As[n % 2])
    def tag4(d, m):
        for r in range(4): A(f"v_bfi_b32 v{d+r}, v{m}, v{vTG}, v{d+r}")
    def untag(regs, m):
        for r in regs: A(f"v_bfi_b32 v{r}, v{m}, v{vMID}, v{r}")
    def publish_D(soff, m, fl=0):
        nop(12)
        tag4(vD, m)
        A("s_mov_b32 exec_hi, 0")
        A(f"buffer_store_dwordx4 v[{vD}:{vD+3}], v{vCQ}, {srd(SRD_WS)}, {soff} offen {FL[fl]}")
        A("s_mov_b32 exec_hi, -1")
    def check(regs, m, tg, full=None):
        tmp = [vP+i for i in range(8)]
        regs = list(regs)
        first = True
        while regs:
            grp, regs = regs[:4], regs[4:]
            outs = []
            for k in range(0, len(grp), 2):
                a = grp[k]; b = grp[k+1] if k+1 < len(grp) else grp[k]
                t = tmp[1 + k//2] if not (first and k == 0) else tmp[0]
                A(f"v_bitop3_b32 v{t}, v{a}, v{b}, v{tg} bitop3:0x7e"); outs.append(t)
            if first:
                if len(outs) > 1: A(f"v_or_b32 v{tmp[0]}, v{outs[0]}, v{outs[1]}")
            elif len(outs) > 1: A(f"v_or3_b32 v{tmp[0]}, v{tmp[0]}, v{outs[0]}, v{outs[1]}")
            else: A(f"v_or_b32 v{tmp[0]}, v{tmp[0]}, v{outs[0]}")
            first = False
        if full is not None:
            A(f"v_xor_b32 v{tmp[1]}, v{full}, v{tg}"); A(f"v_and_or_b32 v{tmp[0]}, v{tmp[0]}, v{m}, v{tmp[1]}")
        elif m is not None: A(f"v_and_b32 v{tmp[0]}, v{m}, v{tmp[0]}")
        A(f"v_cmp_ne_u32 vcc, 0, v{tmp[0]}")
    def poll(tag, regs, issue, slp, m, lanemask=False, tries=POLL_MAX, tg=None, full=None):
        tg = vTG if tg is None else tg
        A(f"s_mov_b32 {sCNT}, {tries}")
        LBL(f"L_poll{tag}")
        issue()
        A(f"s_sub_u32 {sCNT}, {sCNT}, 1"); A("s_waitcnt vmcnt(0)"); A(f"s_cbranch_scc1 L_pollok{tag}")
        check(regs, m, tg, full)
        if slp or lanemask:
            A(f"s_cbranch_vccz L_pollok{tag}")
            if lanemask: A("s_mov_b64 exec, vcc")
            if slp: A(f"s_sleep {slp}")
            A(f"s_branch L_poll{tag}")
        else:
            A(f"s_cbranch_vccnz L_poll{tag}")
        LBL(f"L_pollok{tag}")
    def lds_wait(tag, addr, offs, r0, slp, extra=None, tmp=vP):
        A(f"s_mov_b32 {sCNT}, {POLL_MAX*16}")
        LBL(f"L_lw{tag}")
        if slp: A(f"s_sleep {slp}")
        for i, o in enumerate(offs): A(f"ds_read_b32 v{r0+i}, v{addr} offset:{o}")
        if extra: extra()
        A(f"s_sub_u32 {sCNT}, {sCNT}, 1"); A("s_waitcnt lgkmcnt(0)"); A(f"s_cbranch_scc1 L_lwok{tag}")
        if len(offs) == 2:
            A(f"v_min_u32 v{tmp}, v{r0}, v{r0+1}"); A(f"v_cmp_eq_u32 vcc, 0, v{tmp}")
        else:
            A(f"v_cmp_eq_u32 vcc, 0, v{r0}")
        A(f"s_cbranch_vccnz L_lw{tag}")
        LBL(f"L_lwok{tag}")
    def swap_pairs(b):
        nop(2)
        A(f"v_permlane32_swap_b32 v{b}, v{b+2}"); A(f"v_permlane32_swap_b32 v{b+1}, v{b+3}")

    A("s_cmp_ge_u32 s2, 256"); A("s_cbranch_scc1 L_end")
    A("s_load_dwordx16 s[36:51], s[0:1], 0"); A("s_load_dwordx8 s[52:59], s[0:1], 64")
    if cpf:
        C("pull this kernel's own code into L2 (one 128-B line per thread)")
        A(f"s_getpc_b64 {sPC}")
        LBL("L_pc")
        A(f"v_lshlrev_b32 v{vZ}, 7, v0"); A(f"v_min_u32 v{vZ}, L_codeend-L_pc-4, v{vZ}")
        A(f"global_load_dword v{vTK}, v{vZ}, {sPC}")
    if early:
        C("start the wq tile on its way into L2 from the first code line (one request per thread and instruction)")
        e = vR + 120
        sh = {1: 1, 2: 2, 3: 1}[early]
        A(f"v_lshrrev_b32 v{e}, {sh}, v0"); A(f"v_and_b32 v{e+1}, {(1 << sh) - 1}, v0"); A(f"v_lshlrev_b32 v{e+1}, {8 - sh}, v{e+1}"); A(f"v_lshl_add_u32 v{e}, v{e}, 13, v{e+1}")
        A(f"s_and_b32 {sS}, s2, 7"); A(f"s_lshr_b32 {sH}, s2, 3"); A(f"s_lshl_b32 s6, {sS}, 20"); A(f"s_lshl_b32 s7, {sH}, 8"); A("s_add_u32 s6, s6, s7")
        A(f"v_add_u32 v{e}, s6, v{e}")
        A("s_waitcnt lgkmcnt(0)")
        A(f"global_load_dword v{vTK}, v{e}, s[{P_WQ}:{P_WQ+1}] nt")
        if early == 2:
            A(f"v_add_u32 v{e}, {48*8192}, v{e}"); A(f"global_load_dword v{vTK}, v{e}, s[{P_WQ}:{P_WQ+1}] nt")
        if early == 3:
            A(f"v_add_u32 v{e}, {32*8192}, v{e}"); A(f"global_load_dword v{vTK}, v{e}, s[{P_WQ}:{P_WQ+1}] nt")
    stamp(0)
    if init: A(f"s_memrealtime {sCLK}")
    A(f"v_lshrrev_b32 v1, 6, v0"); A(f"v_and_b32 v{vLANE}, 63, v0")
    A(f"s_lshr_b32 {sH}, s2, 3"); A(f"v_readfirstlane_b32 {sW}, v1"); A(f"s_and_b32 {sS}, s2, 7")
    A("s_mov_b32 s79, s2")
    if hmap == 1:
        A(f"s_and_b32 {sH}, s2, 31"); A(f"s_lshr_b32 {sS}, s2, 5"); A(f"s_lshl_b32 s2, {sH}, 3"); A(f"s_or_b32 s2, s2, {sS}")
    if hmap == 2:
        A(f"s_lshl_b32 {sT0}, {sS}, 2"); A(f"s_and_b32 {sS}, {sH}, 7"); A(f"s_lshr_b32 {sH}, {sH}, 3"); A(f"s_add_u32 {sH}, {sH}, {sT0}")
        A(f"s_lshl_b32 s2, {sH}, 3"); A(f"s_or_b32 s2, s2, {sS}")
    if hmap == 3:
        A(f"s_mov_b32 {sT0}, {sS}"); A(f"s_and_b32 {sS}, {sH}, 7"); A(f"s_and_b32 {sH}, {sH}, 24"); A(f"s_add_u32 {sH}, {sH}, {sT0}")
        A(f"s_lshl_b32 s2, {sH}, 3"); A(f"s_or_b32 s2, s2, {sS}")
    A(f"v_lshlrev_b32 v{vO0}, 4, v{vLANE}"); A(f"v_add_u32 v{vO1}, 4096, v{vO0}")
    A(f"v_lshlrev_b32 v{vT}, 5, v{vLANE}")
    A(f"v_and_b32 v{vT+2}, 15, v{vLANE}"); A(f"v_lshrrev_b32 v{vT+3}, 4, v{vLANE}")
    if hs == 3:
        A(f"v_and_b32 v{vT+4}, 7, v{vLANE}"); A(f"v_and_b32 v{vT+1}, 56, v{vLANE}"); A(f"v_lshl_add_u32 v{vT+1}, v{vT+4}, 6, v{vT+1}")
        A(f"v_and_b32 v{vCQH}, 16, v{vLANE}"); A(f"v_lshl_add_u32 v{vCQH}, v{vT+4}, 5, v{vCQH}")
        A(f"v_lshrrev_b32 v{vT+4}, 5, v{vLANE}"); A(f"v_lshl_add_u32 v{vCQH}, v{vT+4}, 8, v{vCQH}")
    elif wqp:
        A(f"v_and_b32 v{vT+1}, 1, v{vT+2}"); A(f"v_lshlrev_b32 v{vT+1}, 2, v{vT+1}"); A(f"v_lshl_add_u32 v{vT+1}, v{vT+3}, 3, v{vT+1}")
        A(f"v_lshrrev_b32 v{vT+4}, 1, v{vT+2}"); A(f"v_lshl_add_u32 v{vT+1}, v{vT+4}, 5, v{vT+1}")
    else:
        A(f"v_lshlrev_b32 v{vT+1}, 2, v{vLANE}")
    def rown(n): return ((n & 3) + 16*(n >> 2)) if wqp else n
    GROW = 4 if wqp else 32
    if floc == 0:
        A(f"s_mov_b32 {sFC}, {sH}"); A(f"s_mov_b32 {sFR}, {sS}")
    else:
        A(f"s_and_b32 {sFR}, {sH}, 7"); A(f"s_lshr_b32 {sFC}, {sH}, 3")
        if floc == 1: A(f"s_lshl_b32 {sT0}, {sS}, 2"); A(f"s_add_u32 {sFC}, {sFC}, {sT0}")
        else: A(f"s_lshl_b32 {sFC}, {sFC}, 3"); A(f"s_add_u32 {sFC}, {sFC}, {sS}")
    A(f"s_mov_b32 {sHI}, 0xffff0000")
    if not small:
        C("one-hot masks: mask_r = (c>>1 == r) ? (c&1 ? 0xffff0000 : 0xffff) : 0")
        A(f"v_and_b32 v{vT+4}, 1, v{vT+2}"); A(f"v_lshlrev_b32 v{vT+4}, 4, v{vT+4}")
        A(f"v_mov_b32 v{vT+5}, 0xffff"); A(f"v_lshlrev_b32 v{vT+4}, v{vT+4}, v{vT+5}")
        A(f"v_lshrrev_b32 v{vT+5}, 1, v{vT+2}")
        for r in range(4):
            A(f"v_cmp_eq_u32 vcc, {r}, v{vT+5}"); nop(2); A(f"v_cndmask_b32 v{vMASK+r}, 0, v{vT+4}, vcc")
    A(f"v_and_b32 v{vT+4}, 1, v{vT+3}"); A(f"v_lshl_add_u32 v{vCQ}, v{vT+2}, 1, v{vT+4}"); A(f"v_lshlrev_b32 v{vCQ}, 4, v{vCQ}")
    if sm:
        C("sparse-MFMA one-hot: p = c&3; value in slot 0 (index p) for p<3, else slot 1 (index 3)")
        A(f"v_and_b32 v{vT+4}, 3, v{vT+2}"); A(f"v_cmp_eq_u32 vcc, 3, v{vT+4}"); A(f"v_mov_b32 v{vT+5}, 0xffff"); A(f"v_mov_b32 v{vT+6}, {sHI}")
        A(f"v_cndmask_b32 v{vT+5}, v{vT+5}, v{vT+6}, vcc"); A(f"v_cndmask_b32_e64 v{vT+4}, v{vT+4}, 0, vcc")
        A(f"v_or_b32 v{vT+4}, 12, v{vT+4}"); A(f"v_mul_u32_u24 v{vIX}, 0x1111, v{vT+4}"); A(f"v_lshl_or_b32 v{vIX}, v{vIX}, 16, v{vIX}")
        A(f"v_lshrrev_b32 v{vT+4}, 2, v{vT+2}")
        if hs == 3: A(f"v_mov_b32 v{vSMH}, v{vT+5}"); zero4(vA)
        for r in range(2):
            A(f"v_cmp_eq_u32 vcc, {r}, v{vT+4}"); nop(2); A(f"v_cndmask_b32 v{vSM+r}, 0, v{vT+5}, vcc")
    A(f"v_mov_b32 v{vZ}, 0"); A(f"v_mov_b32 v{vF8}, 0xff")
    A(f"s_cmp_eq_u32 {sW}, {W}"); A(f"s_cselect_b32 {sT0}, {sS}, {sFR}")
    if hs == 3: A(f"s_and_b32 {sT0}, {sT0}, 6")
    A(f"s_lshl_b32 {sT0}, {sT0}, 8")
    A("s_waitcnt lgkmcnt(0)")
    mk_srd(SRD_X, P_X, 2048)
    A(f"buffer_load_dwordx4 v[{vXS}:{vXS+3}], v{vT}, {srd(SRD_X)}, 0 offen")
    A(f"buffer_load_dwordx4 v[{vXS+4}:{vXS+7}], v{vT}, {srd(SRD_X)}, 0 offen offset:16")
    if hs == 3: A(f"buffer_load_dwordx2 v[{vX4}:{vX4+1}], v{vT+1}, {srd(SRD_X)}, {sT0} offen")
    else: A(f"buffer_load_dword v{vXP}, v{vT+1}, {srd(SRD_X)}, {sT0} offen")
    mk_srd(SRD_WS, P_WS, WS_SIZE)
    A(f"s_cmp_lg_u32 {sW}, {W}"); A("s_cbranch_scc1 L_stream")

    C("===================== helper wave =====================")
    stamp(1, 2)
    mk_srd(SRD_A, P_WQ, 1024*4096*2)
    def rown2(n): return (n & 3) + 32*(n >> 2)
    if hs & 4:
        rl, rn = {0: (1, 32), 16: (32, 1), 32: (4, None)}[hs & 48]
        def rown2(n): return n*rn if rn else (n & 3) + 128*(n >> 2)
        A(f"v_lshrrev_b32 v{vWOFF}, 1, v{vLANE}"); A(f"v_mul_u32_u24 v{vWOFF}, {rl*8192}, v{vWOFF}"); A(f"v_and_b32 v{vT+4}, 1, v{vLANE}"); A(f"v_lshl_add_u32 v{vWOFF}, v{vT+4}, 4, v{vWOFF}")
        A(f"s_and_b32 {sOFF}, {sH}, 24"); A(f"s_add_u32 {sOFF}, {sOFF}, {sS}"); A(f"s_lshl_b32 {sOFF}, {sOFF}, 8")
        A(f"s_and_b32 {sT2}, {sH}, 7"); A(f"s_lshl_b32 {sT2}, {sT2}, 5"); A(f"s_add_u32 {sOFF}, {sOFF}, {sT2}")
    elif hs & 1:
        A(f"v_lshrrev_b32 v{vWOFF}, 3, v{vLANE}"); A(f"v_lshlrev_b32 v{vWOFF}, 15, v{vWOFF}"); A(f"v_and_b32 v{vT+4}, 7, v{vLANE}"); A(f"v_lshl_add_u32 v{vWOFF}, v{vT+4}, 4, v{vWOFF}")
        A(f"s_lshr_b32 {sOFF}, {sS}, 1"); A(f"s_lshl_b32 {sOFF}, {sOFF}, 21"); A(f"s_lshl_b32 {sT2}, {sH}, 8"); A(f"s_add_u32 {sOFF}, {sOFF}, {sT2}")
        A(f"s_and_b32 {sT2}, {sS}, 1"); A(f"s_lshl_b32 {sT2}, {sT2}, 7"); A(f"s_add_u32 {sOFF}, {sOFF}, {sT2}")
    else:
        A(f"v_mul_u32_u24 v{vWOFF}, {GROW*8192}, v{vT+3}"); A(f"v_lshl_add_u32 v{vWOFF}, v{vT+2}, 4, v{vWOFF}")
        A(f"s_lshl_b32 {sOFF}, {sS}, 20"); A(f"s_lshl_b32 {sT2}, {sH}, 8"); A(f"s_add_u32 {sOFF}, {sOFF}, {sT2}")
    for n in range(32):
        if n: A(f"s_add_u32 {sOFF}, {sOFF}, {((rown2(n) - rown2(n-1)) if hs & 5 else (rown(n) - rown(n-1)))*8192}")
        A(f"buffer_load_dwordx4 v[{vR+4*n}:{vR+4*n+3}], v{vWOFF}, {srd(SRD_A)}, {sOFF} offen nt")
    stamp(2, 2)
    if not nob0: A("s_barrier")
    A(f"s_load_dword {sTAG}, s[{P_WS}:{P_WS+1}], {WS_EPOCH}")
    if not init: A(f"s_memrealtime {sCLK}")
    A(f"v_mov_b32 v{vFF}, {(1 << tb) - 1}"); A(f"v_mov_b32 v{vMID}, {0x80 | (1 << (tb-1))}")
    C("zero the LDS flags / progress stamps")
    A(f"v_lshlrev_b32 v{vT+4}, 2, v{vLANE}")
    for k in range(5): A(f"ds_write_b32 v{vT+4}, v{vZ} offset:{L_TS + 256*k}")
    A(f"ds_write_b32 v{vT+4}, v{vZ} offset:{L_TAG}")
    A("s_waitcnt vmcnt(32)")
    stamp(3, 2)
    layernorm()
    stamp(4, 2)
    A("s_waitcnt lgkmcnt(0)")
    A(f"s_add_u32 {sTAG}, {sTAG}, 0x9e3779b9")
    A(f"v_mov_b32 v{vTG}, {sTAG}")
    A(f"s_lshl_b32 {sT0}, {sCLKlo}, 4")
    if init: A(f"s_add_u32 {sT0}, {sT0}, {init[0]*16}"); A(f"v_mov_b32 v{vT+2}, {init[1]}")
    else: A(f"s_add_u32 {sT0}, {sT0}, 0x40000000"); A(f"v_mov_b32 v{vT+2}, 0")
    A(f"v_mov_b32 v{vT+1}, {sT0}")
    A(f"ds_write_b32 v{vZ}, v{vTG} offset:{L_TAG}")
    A(f"ds_write_b64 v{vZ}, v[{vT+1}:{vT+2}] offset:{L_CT}")
    qs = 8 if hs == 3 else 9
    A(f"s_lshl_b32 {sT0}, s2, {qs}"); A(f"s_add_u32 {sT0}, {sT0}, {WS_QP}")
    A(f"s_lshl_b32 {sOFF}, {sH}, {qs+3}"); A(f"s_add_u32 {sOFF}, {sOFF}, {WS_QP}")
    if hs == 3:
        zero4(vD)
        As = (vA, vA+2)
        build_AH(vPX, 0, As[0])
        for n in range(32):
            if n < 31: build_AH(vPX + (n+1) % 4, (n+1) >> 2, As[(n+1) % 2])
            else: nop(2)
            A(f"s_waitcnt vmcnt({31 - n})")
            mfma(vD, vR+4*n, As[n % 2])
        stamp(5, 2)
        nop(12)
        for r in range(4): A(f"v_mov_b32_dpp v{vD2+r}, v{vD+r} row_ror:8 row_mask:0xf bank_mask:0xf")
        for r in range(4): A(f"v_permlane32_swap_b32 v{vD2+r}, v{vP+r}" if r else f"s_nop 0\n  v_permlane32_swap_b32 v{vD2+r}, v{vP+r}")
        for r in range(4): A(f"v_add_f32 v{vD+r}, v{vD+r}, v{vP+r}")
        tag4(vD, vFF)
        A("s_mov_b64 exec, 0x00ff00ff")
        if not dbg & 8: A(f"buffer_store_dwordx4 v[{vD}:{vD+3}], v{vCQH}, {srd(SRD_WS)}, {sT0} offen sc1")
        A("s_mov_b64 exec, -1")
        if dbg & 8: A("s_branch L_pollokQ")
    else:
        gemv(lambda n: vR+4*n, 32)
        stamp(5, 2)
        if dbg & 8:
            if dbg & 32: publish_D(sT0, vFF)
            A("s_branch L_pollokQ")
        publish_D(sT0, vFF, qst)
    sXC, sXA = "s78", "s74"
    if yloc:
        A(f"s_getreg_b32 {sXC}, hwreg(HW_REG_XCC_ID)"); A(f"s_and_b32 {sXC}, {sXC}, 15")
        if yfake: A(f"s_and_b32 {sT1}, {sH}, {yfake}"); A(f"s_cselect_b32 {sT1}, 16, 0"); A(f"s_or_b32 {sXC}, {sXC}, {sT1}")
        A(f"s_lshl_b32 {sXA}, {sS}, 8"); A(f"s_add_u32 {sXA}, {sXA}, {WS_XR}")
        A(f"s_cmp_lg_u32 {sH}, 0"); A("s_cbranch_scc1 L_noxr")
        A(f"v_mov_b32 v{vD2}, {sXC}"); A(f"v_mov_b32 v{vD2+1}, v{vTG}"); A(f"v_mov_b32 v{vD2+2}, {sXC}"); A(f"v_mov_b32 v{vD2+3}, v{vTG}")
        A("s_mov_b64 exec, 15")
        A(f"buffer_store_dwordx4 v[{vD2}:{vD2+3}], v{vO0}, {srd(SRD_WS)}, {sXA} offen sc1")
        A("s_mov_b64 exec, -1")
        LBL("L_noxr")
    stamp(1)
    if qdly: A(f"s_sleep {qdly}")
    def iss_q():
        for i in range(NQ): A(f"buffer_load_dwordx4 v[{vR+4*i}:{vR+4*i+3}], v{vO0}, {srd(SRD_WS)}, {sOFF} offen offset:{i*1024} {FL[qld]}")
    NQ = 2 if hs == 3 else 4
    poll("Q", range(vR, vR+4*NQ), iss_q, slpQ, vFF)
    stamp(6, 2)
    untag(range(vR, vR+4*NQ), vFF)
    for r in range(4):
        A(f"v_add_f32 v{vR+r}, v{vR+r}, v{vR+4+r}")
        if NQ == 4: A(f"v_add_f32 v{vR+8+r}, v{vR+8+r}, v{vR+12+r}")
    if NQ == 4:
        for r in range(4): A(f"v_add_f32 v{vR+r}, v{vR+r}, v{vR+8+r}")
    A(f"v_and_b32 v{vT+1}, 31, v{vLANE}"); A(f"v_lshrrev_b32 v{vT+2}, 5, v{vLANE}")
    swap_pairs(vR)
    A(f"v_lshlrev_b32 v{vT+3}, 3, v{vT+1}"); A(f"v_lshl_add_u32 v{vT+3}, v{vT+2}, 2, v{vT+3}")
    A(f"v_add_f32 v{vR}, v{vR}, v{vR+2}"); A(f"v_add_f32 v{vR+1}, v{vR+1}, v{vR+3}")
    A(f"v_cvt_pk_bf16_f32 v{vT}, v{vR}, v{vR+1}")
    A(f"ds_write_b32 v{vT+3}, v{vT} offset:{L_Q}")
    A("s_waitcnt lgkmcnt(0)")
    A("s_barrier")
    stamp(2)
    A(f"v_lshlrev_b32 v{vTK}, 4, v{vT+1}")
    A(f"v_mul_u32_u24 v{vCA}, {APS}, v{vT+2}"); A(f"v_add_u32 v{vCA}, v{vCA}, v{vTK}")
    if wop: A(f"v_lshl_add_u32 v{vWOFF}, v{vT+2}, 3, v{vTK}")
    else: A(f"v_lshlrev_b32 v{vWOFF}, 3, v{vLANE}")
    A(f"s_cmp_ge_u32 {sFC}, 28"); A("s_cbranch_scc1 L_hnoffn")
    C("---- FFN: exchange gate/up partials, h = gelu(g)*u ----")
    if gpw: lds_wait("W", vZ, [L_TS + 4*gpw], vT, 8)
    if hs == 3:
        A(f"v_and_b32 v{vT}, 15, v{vLANE}"); A(f"v_lshlrev_b32 v{vT}, 4, v{vT}"); A(f"v_bfe_u32 v{vT+3}, v{vLANE}, 4, 1")
        A(f"v_lshl_add_u32 v{vT+4}, v{vT+3}, 9, v{vT}"); A(f"v_lshl_add_u32 v{vT}, v{vT+3}, 10, v{vT}")
        for k in range(4): A(f"ds_read_b128 v[{vR+4*k}:{vR+4*k+3}], v{vT} offset:{L_GU + k*256}")
        A(f"s_lshl_b32 {sOFF}, {sFC}, 12"); A(f"s_add_u32 {sOFF}, {sOFF}, {WS_GP}")
        A(f"s_lshr_b32 {sT0}, {sFR}, 1"); A(f"s_lshl_b32 {sT0}, {sT0}, 10"); A(f"s_add_u32 {sT0}, {sT0}, {sOFF}")
        A(f"s_and_b32 {sT1}, {sFR}, 1"); A(f"s_lshl_b32 {sT1}, {sT1}, 8"); A(f"s_add_u32 {sT0}, {sT0}, {sT1}")
        A("s_waitcnt lgkmcnt(0)")
        for r in range(4):
            A(f"v_add_f32 v{vR+r}, v{vR+r}, v{vR+4+r}"); A(f"v_add_f32 v{vR+8+r}, v{vR+8+r}, v{vR+12+r}")
        for r in range(4): A(f"v_add_f32 v{vD+r}, v{vR+r}, v{vR+8+r}")
        tag4(vD, vFF)
        A("s_mov_b32 exec_hi, 0")
        if not dbg & 2: A(f"buffer_store_dwordx4 v[{vD}:{vD+3}], v{vT+4}, {srd(SRD_WS)}, {sT0} offen {FL[gst]}")
        A("s_mov_b32 exec_hi, -1")
    else:
        A(f"v_lshl_add_u32 v{vT}, v{vT+2}, 10, v{vTK}")
        for w in range(W):
            A(f"ds_read_b128 v[{vR+4*w}:{vR+4*w+3}], v{vT} offset:{L_GU + w*512}")
        A(f"s_lshl_b32 {sOFF}, {sFC}, 13"); A(f"s_add_u32 {sOFF}, {sOFF}, {WS_GP}")
        A(f"s_lshl_b32 {sT0}, {sFR}, 10"); A(f"s_add_u32 {sT0}, {sT0}, {sOFF}")
        A("s_waitcnt lgkmcnt(0)")
        for r in range(4): A(f"v_add_f32 v{vD+r}, v{vR+r}, v{vR+4+r}")
        tag4(vD, vFF)
        if not dbg & 2: A(f"buffer_store_dwordx4 v[{vD}:{vD+3}], v{vO0}, {srd(SRD_WS)}, {sT0} offen {FL[gst]}")
    if gred:
        C("one workgroup of the group sums the partials and publishes h")
        A(f"s_and_b32 {sT1}, {sFC}, 7"); A(f"s_cmp_lg_u32 {sT1}, {sFR}"); A("s_cbranch_scc1 L_hnoffn")
    if dbg & 18: A("s_branch L_pollokG")
    if gwait: lds_wait("G", vZ, [L_TS + 4*gwait], vT, 8)
    def iss_gu():
        for i in range(2*NQ): A(f"buffer_load_dwordx4 v[{vR+4*i}:{vR+4*i+3}], v{vO0 + i//4}, {srd(SRD_WS)}, {sOFF} offen offset:{(i%4)*1024} {FL[gld]}")
    poll("G", range(vR, vR+8*NQ), iss_gu, slpG, vFF)
    untag(range(vR, vR+8*NQ), vFF)
    for i in range(1, 2*NQ):
        for r in range(4): A(f"v_add_f32 v{vR+r}, v{vR+r}, v{vR+4*i+r}")
    swap_pairs(vR)
    c1 = -2.0*0.7978845608028654*1.4426950408889634
    for k in range(2):
        g, u, t = vR+k, vR+2+k, vT+2*k
        bf16r(g, g); bf16r(u, u)
        A(f"v_mul_f32 v{t}, v{g}, v{g}")
        A(f"v_mul_f32 v{t}, {f32(0.044715)}, v{t}")
        A(f"v_fma_f32 v{t}, v{t}, v{g}, v{g}")
        A(f"v_mul_f32 v{t}, {f32(c1)}, v{t}")
        A(f"v_exp_f32 v{t}, v{t}"); nop(1)
        A(f"v_add_f32 v{t}, 1.0, v{t}")
        A(f"v_rcp_f32 v{t}, v{t}"); nop(1)
        A(f"v_mul_f32 v{t}, v{t}, v{g}")
        bf16r(t, t)
        A(f"v_mul_f32 v{t}, v{t}, v{u}")
        A(f"v_cvt_pk_bf16_f32 v{vPK+k}, v{t}, v{t}")
    if gred:
        A(f"v_bfi_b32 v{vPK}, {sHI}, v{vPK1}, v{vPK}"); A(f"v_mov_b32 v{vPK1}, v{vTG}")
        A(f"s_lshl_b32 {sT0}, {sFC}, 9"); A(f"s_add_u32 {sT0}, {sT0}, {WS_HP}")
        A(f"buffer_store_dwordx2 v[{vPK}:{vPK+1}], v{vWOFF}, {srd(SRD_WS)}, {sT0} offen sc1")
    else:
        A(f"ds_write_b64 v{vWOFF}, v[{vPK}:{vPK+1}] offset:{L_V}")
        if not yloc: A(f"ds_write_b32 v{vZ}, v{vF8} offset:{L_VF}")
    LBL("L_hnoffn")
    sDC, sDR = (sH, sS) if gred == 2 else (sFC, sFR)
    def xh_part():
        if yloc:
            C("is this workgroup on the same XCD as workgroup (0, s)?")
            def iss_x():
                A(f"buffer_load_dwordx2 v[{vR}:{vR+1}], v{vZ}, {srd(SRD_WS)}, {sXA} offen sc1")
            poll("X", [vR+1], iss_x, 8, None)
            A(f"v_readfirstlane_b32 {sT0}, v{vR}")
            A(f"s_cmp_eq_u32 {sT0}, {sXC}"); A(f"s_cselect_b32 {sXC}, 0, 0x100")
            A(f"v_mov_b32 v{vR}, {sXC}")
            A(f"ds_write_b32 v{vZ}, v{vR} offset:{L_CF}")
            if not gred: A(f"ds_write_b32 v{vZ}, v{vF8} offset:{L_VF}")
        if gred:
            A(f"s_cmp_ge_u32 {sDC}, 28"); A("s_cbranch_scc1 L_noh")
            A(f"s_lshl_b32 {sT0}, {sDC}, 9"); A(f"s_add_u32 {sOFF}, {sT0}, {WS_HP}")
            def iss_h():
                A(f"buffer_load_dwordx2 v[{vR}:{vR+1}], v{vWOFF}, {srd(SRD_WS)}, {sOFF} offen sc1")
            poll("H", [vR+1], iss_h, 8, None)
            A(f"v_and_b32 v{vPK}, 0xffff, v{vR}"); A(f"v_lshrrev_b32 v{vPK1}, 16, v{vR}")
            A(f"v_lshl_or_b32 v{vPK}, v{vPK}, 16, v{vPK}"); A(f"v_lshl_or_b32 v{vPK1}, v{vPK1}, 16, v{vPK1}")
            A(f"ds_write_b64 v{vWOFF}, v[{vPK}:{vPK+1}] offset:{L_V}")
            A(f"ds_write_b32 v{vZ}, v{vF8} offset:{L_VF}")
            LBL("L_noh")
    if xh:
        lds_wait("X", vZ, [L_TS + 4*xh], vT, 8)
        xh_part()
    C("---- periodic update of the common progress line (see header) ----")
    c0, cstep, c1_ = ctl
    sh = (64*2*cdn).bit_length() - 1 - 3
    assert 64*2*cdn == 1 << (sh+3) and c0 - 2*cdn >= 1 and c1_ + cwait <= NT
    sCN, sCA = sNEXT, sCUR
    vCT = vT+5
    A(f"s_mov_b32 {sCN}, {c0}"); A(f"s_mov_b32 {sCA}, {WS_CR}")
    A(f"v_mov_b32 v{vT}, {4*(c0 - 2*cdn)}"); A(f"v_mov_b32 v{vCT}, v{vTG}")
    A(f"v_and_b32 v{vT+1}, {nrec-1}, v{vLANE}"); A(f"v_lshlrev_b32 v{vT+1}, 8, v{vT+1}")
    sel = 256//nrec
    A(f"s_and_b32 {sT0}, s79, 7"); A(f"s_lshr_b32 {sT1}, s79, 3")
    A(f"s_lshr_b32 {sSTEP}, {sT1}, {sel.bit_length()-1}"); A(f"s_lshl_b32 {sSTEP}, {sSTEP}, 3"); A(f"s_add_u32 {sSTEP}, {sSTEP}, {sT0}"); A(f"s_lshl_b32 {sSTEP}, {sSTEP}, 8")
    A(f"s_mul_i32 {sFL}, {sT0}, 5"); A(f"s_xor_b32 {sFL}, {sFL}, {sT1}"); A(f"s_and_b32 {sFL}, {sFL}, {sel-1}")
    if rpt:
        A(f"s_cmp_lg_u32 {sFL}, 0"); A(f"s_cbranch_scc1 L_cal")
        A(f"s_add_u32 {sT1}, {sCA}, {sSTEP}"); A(f"v_lshlrev_b32 v{vT+2}, 14, v{vLANE}")
        A("s_mov_b64 exec, 3")
        if rpt == 1: A(f"buffer_load_dword v{vT+6}, v{vT+2}, {srd(SRD_WS)}, {sT1} offen")
        else: A(f"buffer_store_dword v{vZ}, v{vT+2}, {srd(SRD_WS)}, {sT1} offen offset:64 sc1")
        A("s_mov_b64 exec, -1")
    LBL("L_cal")
    lds_wait("C", vT, [L_TS + 8*cdn, L_TS + 640 + 8*cdn], vR+2, 8)
    A(f"ds_read_b32 v{vR}, v{vT} offset:{L_TS}"); A(f"ds_read_b32 v{vR+1}, v{vT} offset:{L_TS + 640}")
    A(f"v_add_u32 v{vD+1}, v{vR+2}, v{vR+3}")
    A(f"v_mov_b32 v{vD+2}, v{vCT}"); A(f"v_mov_b32 v{vD+3}, v{vCT}")
    A("s_waitcnt lgkmcnt(0)")
    A(f"v_add_u32 v{vD}, v{vR}, v{vR+1}")
    A(f"s_cmp_lg_u32 {sFL}, 0"); A(f"s_cbranch_scc1 L_cnp")
    A(f"s_add_u32 {sT1}, {sCA}, {sSTEP}")
    A("s_mov_b64 exec, 15")
    A(f"buffer_store_dwordx4 v[{vD}:{vD+3}], v{vO0}, {srd(SRD_WS)}, {sT1} offen sc1")
    A("s_mov_b64 exec, -1")
    LBL("L_cnp")
    if cwait: lds_wait("D", vT, [L_TS + 8*cdn + 4*cwait], vR+2, 8)
    def iss_c():
        A(f"buffer_load_dwordx4 v[{vR}:{vR+3}], v{vT+1}, {srd(SRD_WS)}, {sCA} offen {FL[cld]}")
    poll("C", [vR+3], iss_c, cslp, None, tries=512, tg=vCT)
    A(f"v_sub_u32 v{vR}, v{vR+1}, v{vR}"); A(f"v_sub_u32 v{vR+2}, v{vR+1}, v{vD+1}")
    wave_reduce("v_add_u32", vR); wave_reduce("v_add_u32", vR+2)
    A(f"v_lshrrev_b32 v{vR+1}, {sh}, v{vR}")
    if cscale: A(f"v_subrev_u32 v{vR+1}, {cscale & 0xffffffff}, v{vR+1}")
    A(f"v_ashrrev_i32 v{vR+2}, 3, v{vR+2}")
    A(f"v_lshl_add_u32 v{vR}, v{vD+1}, 3, v{vR+2}")
    if sl2:
        vAP, vTP = vD2, vD2+1
        A(f"s_cmp_eq_u32 {sCN}, {c0}"); A("s_cbranch_scc1 L_first")
        A(f"v_sub_u32 v{vR+1}, v{vR}, v{vAP}")
        if cstep & (cstep-1): A(f"v_mul_u32_u24 v{vR+1}, {round(16384/cstep)}, v{vR+1}"); A(f"v_lshrrev_b32 v{vR+1}, 14, v{vR+1}")
        else: A(f"v_lshrrev_b32 v{vR+1}, {cstep.bit_length()-1}, v{vR+1}")
        A(f"v_add_u32 v{vTP}, {sl2}, v{vTP}"); A(f"v_min_u32 v{vR+1}, v{vR+1}, v{vTP}")
        LBL("L_first")
        A(f"v_mov_b32 v{vAP}, v{vR}"); A(f"v_mov_b32 v{vTP}, v{vR+1}")
    A(f"v_mul_u32_u24 v{vR+2}, {sCN}, v{vR+1}")
    A(f"v_sub_u32 v{vR}, v{vR}, v{vR+2}")
    if cbias: A(f"v_add_u32 v{vR}, {(cbias*16) & 0xffffffff}, v{vR}")
    A(f"ds_write_b64 v{vZ}, v[{vR}:{vR+1}] offset:{L_CT}")
    if ptm is not None:
        A(f"s_cmp_lg_u32 {sCN}, {c0 + ptm*cstep}"); A("s_cbranch_scc1 L_noptm")
        A(f"s_add_u32 {sT2}, {sFC}, 32"); A(f"s_min_u32 {sT2}, {sT2}, 59")
        A(f"s_lshl_b32 {sT1}, {sFR}, 6"); A(f"s_add_u32 {sT1}, {sT1}, {sT2}"); A(f"s_lshl_b32 {sT1}, {sT1}, 9"); A(f"s_add_u32 {sT1}, {sT1}, {WS_FO}")
        A(f"s_lshl_b32 {sT0}, {sS}, 6"); A(f"s_add_u32 {sT0}, {sT0}, {sH}"); A(f"s_lshl_b32 {sT0}, {sT0}, 9"); A(f"s_add_u32 {sT0}, {sT0}, {WS_FO}")
        A(f"s_mul_i32 {sT2}, s2, {APS}"); A(f"s_add_u32 {sT2}, {sT2}, {WS_AP}")
        A(f"v_lshlrev_b32 v{vT+4}, 7, v{vLANE}")
        A("s_mov_b64 exec, 15")
        A(f"buffer_load_dword v{vT+6}, v{vT+4}, {srd(SRD_WS)}, {sT1} offen"); A(f"buffer_load_dword v{vT+6}, v{vT+4}, {srd(SRD_WS)}, {sT0} offen")
        A("s_mov_b64 exec, 31")
        A(f"buffer_load_dword v{vT+6}, v{vT+4}, {srd(SRD_WS)}, {sT2} offen")
        A("s_mov_b64 exec, -1")
        LBL("L_noptm")
    A(f"v_add_u32 v{vT}, {4*cstep}, v{vT}"); A(f"v_add_u32 v{vCT}, 0x10000, v{vCT}")
    A(f"s_add_u32 {sCN}, {sCN}, {cstep}"); A(f"s_xor_b32 {sCA}, {sCA}, 0x4000")
    A(f"s_cmp_le_u32 {sCN}, {c1_}"); A("s_cbranch_scc1 L_cal")
    stamp(3)
    if not xh: xh_part()
    C("---- tail set-up ----")
    A(f"s_lshl_b32 {sT0}, {sS}, 8"); A(f"s_lshl_b32 {sT1}, {sH}, 3"); A(f"s_add_u32 {sBASE}, {sT0}, {sT1}")
    A(f"buffer_load_dwordx2 v[{vQ}:{vQ+1}], v{vZ}, {srd(SRD_X)}, {sBASE} offen")
    if cpf >= 2:
        A(f"v_lshlrev_b32 v{vT}, 7, v{vLANE}"); A(f"v_add_u32 v{vT+1}, L_last-L_pc, v{vT}"); A(f"v_min_u32 v{vT+1}, L_codeend-L_pc-4, v{vT+1}")
        A(f"v_add_u32 v{vT}, L_tail-L_pc, v{vT}"); A(f"v_min_u32 v{vT}, L_stream-L_pc, v{vT}")
        A(f"global_load_dword v{vT+6}, v{vT}, {sPC}"); A(f"global_load_dword v{vT+6}, v{vT+1}, {sPC}")
    mk_srd(SRD_B, P_OUT, 2048)
    A(f"s_mul_i32 {sOFF}, s2, {APS}"); A(f"s_add_u32 {sOFF}, {sOFF}, {WS_AP}")
    A(f"s_mul_i32 {sNEXT}, {sH}, {8*APS}"); A(f"s_add_u32 {sNEXT}, {sNEXT}, {WS_AP}")
    A(f"s_lshl_b32 {sSTEP}, {sS}, 15"); A(f"s_lshl_b32 {sT1}, {sH}, 4"); A(f"s_add_u32 {sSTEP}, {sSTEP}, {sT1}"); A(f"s_add_u32 {sSTEP}, {sSTEP}, {WS_FO}")
    A(f"v_and_b32 v{vT+3}, 7, v{vLANE}"); A(f"v_lshrrev_b32 v{vT+2}, 5, v{vLANE}"); A(f"v_xor_b32 v{vT+3}, v{vT+3}, v{vT+2}")
    A(f"v_mul_u32_u24 v{vT+3}, {APS}, v{vT+3}"); A(f"v_lshrrev_b32 v{vT+2}, 3, v{vLANE}"); A(f"v_lshl_add_u32 v{vQ+2}, v{vT+2}, 3, v{vT+3}")
    A(f"v_lshlrev_b32 v{vQ+3}, 9, v{vLANE}")
    A(f"s_mov_b32 s72, 0"); A(f"s_mov_b32 s73, -1")
    vFO = vY + 20
    if pt & 1:
        A("s_mov_b32 exec_hi, 15")
        A(f"buffer_load_dwordx4 v[{vY}:{vY+3}], v{vO0}, {srd(SRD_WS)}, {sOFF} offen")
        A("s_mov_b32 exec_hi, -1")
    if pt & 2:
        A("s_mov_b32 exec_hi, 0x0fffffff")
        A(f"buffer_load_dwordx4 v[{vY+4}:{vY+7}], v{vQ+3}, {srd(SRD_WS)}, {sSTEP} offen sc1")
        A("s_mov_b32 exec_hi, -1")
    if pt & 4:
        A(f"buffer_load_dwordx2 v[{vY+16}:{vY+17}], v{vQ+2}, {srd(SRD_WS)}, {sNEXT} offen offset:512 sc1")
        for i in range(4): A(f"buffer_load_dwordx4 v[{vY+4*i}:{vY+4*i+3}], v{vCA}, {srd(SRD_WS)}, {sNEXT} offen offset:{i*2*APS} sc1")
    zero4(vFO)
    LBL("L_tail")
    if apt or fpt:
        lds_wait("T", vZ, [L_TS + 4*(apt or fpt)], vT+1, 1)
        A(f"v_lshlrev_b32 v{vT+4}, 7, v{vLANE}")
        if apt and ast == 2:
            A(f"v_not_b32 v{vD}, v{vTG}")
            for r in range(1, 4): A(f"v_mov_b32 v{vD+r}, v{vD}")
            A("s_mov_b32 exec_hi, 255")
            A(f"buffer_store_dwordx4 v[{vD}:{vD+3}], v{vO0}, {srd(SRD_WS)}, {sOFF} offen")
        elif apt:
            A("s_mov_b64 exec, 31")
            A(f"buffer_load_dword v{vT+5}, v{vT+4}, {srd(SRD_WS)}, {sOFF} offen")
        if fpt:
            A(f"s_add_u32 {sT2}, {sFC}, 32"); A(f"s_min_u32 {sT2}, {sT2}, 59")
            A(f"s_lshl_b32 {sT1}, {sFR}, 6"); A(f"s_add_u32 {sT1}, {sT1}, {sT2}"); A(f"s_lshl_b32 {sT1}, {sT1}, 9"); A(f"s_add_u32 {sT1}, {sT1}, {WS_FO}")
            A(f"s_lshl_b32 {sT0}, {sS}, 6"); A(f"s_add_u32 {sT0}, {sT0}, {sH}"); A(f"s_lshl_b32 {sT0}, {sT0}, 9"); A(f"s_add_u32 {sT0}, {sT0}, {WS_FO}")
            A("s_mov_b64 exec, 15")
            A(f"buffer_load_dword v{vT+5}, v{vT+4}, {srd(SRD_WS)}, {sT1} offen"); A(f"buffer_load_dword v{vT+5}, v{vT+4}, {srd(SRD_WS)}, {sT0} offen")
        A("s_mov_b64 exec, -1")
    vX = vXS
    if pre:
        def rd_ml():
            for w in range(W):
                A(f"ds_read_b128 v[{vP+4*w}:{vP+4*w+3}], v{vZ} offset:{L_ML + w*32}")
                A(f"ds_read_b32 v{vT+1+w}, v{vZ} offset:{L_ML + w*32 + 16}")
        def rd_o():
            for w in range(W):
                A(f"ds_read_b128 v[{vX+4*w}:{vX+4*w+3}], v{vTK} offset:{L_O + w*512}")
        C("flags are read before the data in the same in-order batch")
        lds_wait("M", vZ, [L_MLF, L_MLF+4], vT+3, 1, extra=rd_ml, tmp=vT+3)
        C("---- scale factors of the two stream waves and lse of the block ----")
        A(f"v_max_f32 v{vM}, v{vT+1}, v{vT+2}")
        for w in range(W):
            y = vP+4*w
            A(f"v_sub_f32 v{vT+1+w}, v{vT+1+w}, v{vM}"); A(f"v_exp_f32 v{vT+1+w}, v{vT+1+w}")
            A(f"v_add_f32 v{y}, v{y}, v{y+1}"); A(f"v_add_f32 v{y+2}, v{y+2}, v{y+3}"); A(f"v_add_f32 v{y}, v{y}, v{y+2}")
        A(f"v_mul_f32 v{vL}, v{vT+1}, v{vP}"); A(f"v_fmac_f32 v{vL}, v{vT+2}, v{vP+4}")
        A(f"v_rcp_f32 v{vT+3}, v{vL}"); A(f"v_log_f32 v{vT+4}, v{vL}")
        nop(1)
        A(f"v_mul_f32 v{vT+1}, v{vT+1}, v{vT+3}"); A(f"v_mul_f32 v{vT+2}, v{vT+2}, v{vT+3}"); A(f"v_add_f32 v{vM}, v{vM}, v{vT+4}")
        lds_wait("E", vZ, [L_DONE, L_DONE+4], vT+3, 0, extra=rd_o, tmp=vT+3)
        stamp(4); stamp(1, 3)
        C("---- combine the two stream waves, publish the block partial ----")
    else:
        def rd_part():
            for w in range(W):
                A(f"ds_read_b128 v[{vP+4*w}:{vP+4*w+3}], v{vZ} offset:{L_ML + w*32}")
                A(f"ds_read_b32 v{vT+1+w}, v{vZ} offset:{L_ML + w*32 + 16}")
            for w in range(W):
                A(f"ds_read_b128 v[{vX+4*w}:{vX+4*w+3}], v{vTK} offset:{L_O + w*512}")
        C("flags are read before the data in the same in-order batch")
        lds_wait("E", vZ, [L_DONE, L_DONE+4], vT+3, 0, extra=rd_part if fuse else None, tmp=vT+3)
        stamp(4); stamp(1, 3)
        C("---- combine the two stream waves, publish the block partial ----")
        if not fuse:
            rd_part()
            A("s_waitcnt lgkmcnt(2)")
        A(f"v_max_f32 v{vM}, v{vT+1}, v{vT+2}")
        for w in range(W):
            y = vP+4*w
            A(f"v_sub_f32 v{vT+1+w}, v{vT+1+w}, v{vM}"); A(f"v_exp_f32 v{vT+1+w}, v{vT+1+w}")
            A(f"v_add_f32 v{y}, v{y}, v{y+1}"); A(f"v_add_f32 v{y+2}, v{y+2}, v{y+3}"); A(f"v_add_f32 v{y}, v{y}, v{y+2}")
        A(f"v_mul_f32 v{vL}, v{vT+1}, v{vP}"); A(f"v_fmac_f32 v{vL}, v{vT+2}, v{vP+4}")
        A(f"v_rcp_f32 v{vT+3}, v{vL}"); A(f"v_log_f32 v{vT+4}, v{vL}")
        A("s_waitcnt lgkmcnt(0)")
        A(f"v_mul_f32 v{vT+1}, v{vT+1}, v{vT+3}"); A(f"v_mul_f32 v{vT+2}, v{vT+2}, v{vT+3}"); A(f"v_add_f32 v{vM}, v{vM}, v{vT+4}")
    for r in range(4): A(f"v_mul_f32 v{vD+r}, v{vT+1}, v{vX+r}")
    for r in range(4): A(f"v_fmac_f32 v{vD+r}, v{vT+2}, v{vX+4+r}")
    tag4(vD, vFF)
    for r in range(4): A(f"v_cndmask_b32_e64 v{vD+r}, v{vD+r}, v{vTG if r & 1 else vM}, {sMASK}")
    A("s_mov_b32 exec_hi, 15")
    A(f"buffer_store_dwordx4 v[{vD}:{vD+3}], v{vO0}, {srd(SRD_WS)}, {sOFF} offen {FL[ast]}")
    A("s_mov_b32 exec_hi, -1")
    stamp(2, 3)
    def touch_f():
        A("s_mov_b32 exec_hi, 0x0fffffff")
        A(f"buffer_load_dwordx4 v[{vY+120}:{vY+123}], v{vQ+3}, {srd(SRD_WS)}, {sSTEP} offen sc1")
        A("s_mov_b32 exec_hi, -1")
    if fwait == 2: touch_f()
    if adly: A(f"s_sleep {adly}")
    vLS = vY + 16
    def iss_a(b=vY):
        A(f"buffer_load_dwordx2 v[{b+16}:{b+17}], v{vQ+2}, {srd(SRD_WS)}, {sNEXT} offen offset:512 {FL[ald]}")
        for i in range(4): A(f"buffer_load_dwordx4 v[{b+4*i}:{b+4*i+3}], v{vCA}, {srd(SRD_WS)}, {sNEXT} offen offset:{i*2*APS} {FL[ald]}")
    if spoll:
        C("wait for the 8 tag words through the scalar path first (does not queue behind the weight loads)")
        A(f"s_add_u32 s8, s{P_WS}, {sNEXT}"); A(f"s_addc_u32 s9, s{P_WS+1}, 0")
        A(f"s_mov_b32 {sCNT}, {4096}")
        LBL("L_spoll")
        for i in range(8): A(f"s_load_dword s{36+i}, s[8:9], {i*APS + 516} glc")
        A(f"s_sub_u32 {sCNT}, {sCNT}, 1"); A("s_waitcnt lgkmcnt(0)"); A("s_cbranch_scc1 L_spollok")
        A(f"s_xor_b32 s36, s36, {sTAG}")
        for i in range(1, 8): A(f"s_xor_b32 s{36+i}, s{36+i}, {sTAG}"); A(f"s_or_b32 s36, s36, s{36+i}")
        A("s_cbranch_scc1 L_spoll")
        LBL("L_spollok")
    if lseonly:
        def iss_l():
            A(f"buffer_load_dwordx2 v[{vLS}:{vLS+1}], v{vQ+2}, {srd(SRD_WS)}, {sNEXT} offen offset:512 sc1")
        poll("A0", [vLS+1], iss_l, slpA, vFF)
    if not pipeA:
        poll("A", list(range(vY, vY+16)), iss_a, slpA, vFF, full=vLS+1)
    else:
        sets = [vY + 24 + 20*k for k in range(pipeA)]
        assert sets[-1] + 18 <= vR + 128
        A(f"s_mov_b32 {sCNT}, {POLL_MAX}")
        for k in range(pipeA - 1):
            iss_a(sets[k])
            if pslp: A(f"s_sleep {pslp}")
        LBL("L_pollA")
        for k in range(pipeA):
            iss_a(sets[(k - 1) % pipeA])
            A(f"s_waitcnt vmcnt({5*(pipeA-1)})")
            check(list(range(sets[k], sets[k]+16)), vFF, vTG, sets[k]+17)
            A(f"s_cbranch_vccz L_gotA{k}")
        A(f"s_sub_u32 {sCNT}, {sCNT}, 1"); A("s_cbranch_scc0 L_pollA")
        for k in range(pipeA):
            LBL(f"L_gotA{k}")
            A(f"v_mov_b32 v{vLS}, v{sets[k]+16}")
            for r in range(0, 16, 2): A(f"v_pk_mov_b32 v[{vY+r}:{vY+r+1}], v[{sets[k]+r}:{sets[k]+r+1}], v[{sets[k]+r}:{sets[k]+r+1}] op_sel:[0,1]")
            if k < pipeA - 1: A("s_branch L_pollokA")
        LBL("L_pollokA")
    stamp(5); stamp(3, 3)
    C("---- merge the head's 8 partials -> o (bf16) -> LDS for the wo GEMV ----")
    A(f"v_mov_b32 v{vM}, v{vLS}")
    for k, ctrl in enumerate(("quad_perm:[1,0,3,2]", "quad_perm:[2,3,0,1]", "row_half_mirror")):
        untag(range(vY+4*k, vY+4*k+4), vFF); dpp("v_max_f32", vM, vM, vM, ctrl)
    A(f"v_sub_f32 v{vLS}, v{vLS}, v{vM}"); A(f"v_exp_f32 v{vLS}, v{vLS}")
    untag(range(vY+12, vY+14), vFF)
    A(f"v_mov_b32 v{vL}, v{vLS}")
    untag(range(vY+14, vY+16), vFF)
    for r in range(4): dpp("v_mul_f32", vD+r, vLS, vY+r, "row_newbcast:0")
    ctr = ["quad_perm:[1,0,3,2]", "quad_perm:[2,3,0,1]", "row_half_mirror"]
    for i in range(1, 4):
        dpp("v_add_f32", vL, vL, vL, ctr[i-1])
        for r in range(4): dpp("v_fmac_f32", vD+r, vLS, vY+4*i+r, f"row_newbcast:{2*i}")
    A(f"v_rcp_f32 v{vL}, v{vL}")
    nop(1)
    A(f"v_permlane32_swap_b32 v{vD}, v{vD+2}"); A(f"v_permlane32_swap_b32 v{vD+1}, v{vD+3}")
    A(f"v_add_f32 v{vT}, v{vD}, v{vD+2}"); A(f"v_add_f32 v{vT+1}, v{vD+1}, v{vD+3}")
    A(f"v_mul_f32 v{vT}, v{vT}, v{vL}"); A(f"v_mul_f32 v{vT+1}, v{vT+1}, v{vL}")
    A(f"v_cvt_pk_bf16_f32 v{vPK}, v{vT}, v{vT}"); A(f"v_cvt_pk_bf16_f32 v{vPK1}, v{vT+1}, v{vT+1}")
    A(f"ds_write_b64 v{vWOFF}, v[{vPK}:{vPK+1}] offset:{L_V + 512}")
    A(f"ds_write_b32 v{vZ}, v{vF8} offset:{L_VF + 4}")
    stamp(4, 3); stamp(5, 3)
    C("---- final: 4 output columns = x + sum of 32 attention + 28 FFN partials ----")
    if yloc:
        A(f"s_cmp_lg_u32 {sXC}, 0"); A("s_cbranch_scc1 L_fin")
        A(f"s_mov_b32 {sXA}, -1")
        LBL("L_final")
    xs = [vY+4, vY+5, vY+6, vY+7]
    A(f"v_lshlrev_b32 v{xs[0]}, 16, v{vQ}"); A(f"v_and_b32 v{xs[1]}, {sHI}, v{vQ}")
    A(f"v_lshlrev_b32 v{xs[2]}, 16, v{vQ+1}"); A(f"v_and_b32 v{xs[3]}, {sHI}, v{vQ+1}")
    if fwait == 3: touch_f()
    if fwait: lds_wait("P", vZ, [L_PUB + 4], vT, 0)
    if fdly: A(f"s_sleep {fdly}")
    A("s_mov_b32 exec_hi, 0x0fffffff")
    def iss_f():
        A(f"buffer_load_dwordx4 v[{vFO}:{vFO+3}], v{vQ+3}, {srd(SRD_WS)}, {sSTEP} offen sc1")
    poll("F", range(vFO, vFO+4), iss_f, slpF, vF8, lanemask=True)
    A("s_mov_b32 exec_lo, -1"); A("s_mov_b32 exec_hi, 0x0fffffff")
    if yloc:
        A(f"v_and_b32 v{vT}, 0x100, v{vFO}"); A(f"v_cmp_ne_u32 vcc, 0, v{vT}")
        A(f"v_and_b32 v{vFO}, 0xfffffeff, v{vFO}")
        A(f"s_and_b32 {sXA}, {sXA}, vcc_lo")
    untag(range(vFO, vFO+4), vF8)
    A("s_mov_b64 exec, -1")
    stamp(6); stamp(6, 3)
    cols = [vFO, vFO+1, vFO+2, vFO+3]
    for ctrl in ("quad_perm:[1,0,3,2]", "quad_perm:[2,3,0,1]", "row_half_mirror", "row_mirror"):
        for c in cols: dpp("v_add_f32", c, c, c, ctrl)
    for c in cols: dpp("v_add_f32", c, c, c, "row_bcast:15", rm="0xa")
    for c in cols: bf16r(c, c)
    for k in range(4): A(f"v_add_f32 v{xs[k]}, v{xs[k]}, v{cols[k]}")
    for k, st in enumerate((sT0, sT1, sT2, sT3)):
        A(f"v_readlane_b32 {st}, v{cols[k]}, 63")
    for k in range(4): bf16r(xs[k], xs[k])
    for k, st in enumerate((sT0, sT1, sT2, sT3)):
        A(f"v_add_f32 v{xs[k]}, {st}, v{xs[k]}")
    A(f"v_cvt_pk_bf16_f32 v{vT+1}, v{xs[0]}, v{xs[1]}"); A(f"v_cvt_pk_bf16_f32 v{vT+2}, v{xs[2]}, v{xs[3]}")
    A("s_mov_b64 exec, 0x10000")
    A(f"buffer_store_dwordx2 v[{vT+1}:{vT+2}], v{vZ}, {srd(SRD_B)}, {sBASE} offen")
    if yloc:
        A(f"s_cmp_lg_u32 {sH}, 0"); A("s_cbranch_scc1 L_fin")
        A(f"s_cmp_eq_u32 {sXA}, 0"); A("s_cbranch_scc1 L_allfin")
        C("workgroup (0, s) also finishes the columns of the workgroups that sit on another XCD")
        A("s_mov_b64 exec, -1")
        A(f"s_ff1_i32_b32 {sT0}, {sXA}"); A(f"s_bitset0_b32 {sXA}, {sT0}")
        A(f"s_lshl_b32 {sBASE}, {sS}, 8"); A(f"s_lshl_b32 {sT1}, {sT0}, 3"); A(f"s_add_u32 {sBASE}, {sBASE}, {sT1}")
        A(f"s_lshl_b32 {sSTEP}, {sS}, 15"); A(f"s_lshl_b32 {sT1}, {sT0}, 4"); A(f"s_add_u32 {sSTEP}, {sSTEP}, {sT1}"); A(f"s_add_u32 {sSTEP}, {sSTEP}, {WS_FO}")
        A(f"buffer_load_dwordx2 v[{vQ}:{vQ+1}], v{vZ}, {srd(SRD_X)}, {sBASE} offen")
        zero4(vFO)
        A("s_waitcnt vmcnt(0)")
        A("s_branch L_final")
        LBL("L_allfin")
    A("s_cmp_lg_u32 s2, 0"); A("s_cbranch_scc1 L_fin")
    A(f"buffer_store_dword v{vTG}, v{vZ}, {srd(SRD_WS)}, 0 offen offset:{WS_EPOCH}")
    if probe is not None:
        unit_i, mult = probe
        A("s_mov_b64 exec, -1")
        A("s_memrealtime s[72:73]")
        if unit_i == "stall":
            A(f"v_lshlrev_b32 v{vT}, 2, v{vLANE}")
            for k, o in enumerate((8, 12, 256+4, 256+8)): A(f"ds_read_b32 v{vT+1+k}, v{vT} offset:{L_TS + o}")
            A("s_waitcnt lgkmcnt(0)")
            A(f"v_sub_u32 v{vT+1}, v{vT+2}, v{vT+1}"); A(f"v_sub_u32 v{vT+3}, v{vT+4}, v{vT+3}"); A(f"v_mov_b32 v{vT+2}, 230")
            A(f"v_cmp_gt_i32 vcc, v{vT+1}, v{vT+2}"); A(f"s_bcnt1_i32_b64 {sT0}, vcc")
            A(f"v_cmp_gt_i32 vcc, v{vT+3}, v{vT+2}"); A("s_bitset0_b32 vcc_hi, 31"); A("s_bitset0_b32 vcc_lo, 0"); A(f"s_bcnt1_i32_b64 {sT1}, vcc")
            A(f"s_add_u32 {sT0}, {sT0}, {sT1}"); A(f"s_add_u32 {sT0}, {sT0}, {sCLKlo}")
            unit_i = "x"
        if unit_i not in (None, "x"): A(f"ds_read_b32 v{vT}, v{vZ} offset:{L_TS + 4*unit_i}")
        A("s_waitcnt lgkmcnt(0)")
        if unit_i == "x": pass
        elif unit_i is not None: A(f"v_readfirstlane_b32 {sT0}, v{vT}"); nop(4)
        else: A(f"s_mov_b32 {sT0}, s72")
        A(f"s_sub_u32 {sT0}, {sT0}, {sCLKlo}"); A(f"s_mul_i32 {sT0}, {sT0}, {mult}"); A(f"s_min_u32 {sT0}, {sT0}, 100000")
        LBL("L_probe")
        A("s_memrealtime s[74:75]"); A("s_waitcnt lgkmcnt(0)"); A(f"s_sub_u32 {sT1}, s74, s72"); A(f"s_cmp_lt_u32 {sT1}, {sT0}"); A("s_cbranch_scc1 L_probe")
    LBL("L_fin")
    stamp(7)
    stamp_store(8)
    LBL("L_end")
    A("s_endpgm")

    LBL("L_stream")
    C("===================== stream waves =====================")
    mk_srd(SRD_A, P_WG, 1024*3584*2); mk_srd(SRD_B, P_WU, 1024*3584*2)
    NJ = 16
    if hs & 8:
        rl, rn = {0: (1, 32), 16: (32, 1), 32: (4, None)}[hs & 48]
        def rown(n): return n*rn if rn else (n & 3) + 128*(n >> 2)
        A(f"v_lshrrev_b32 v{vWOFF}, 1, v{vLANE}"); A(f"v_mul_u32_u24 v{vWOFF}, {rl*7168}, v{vWOFF}"); A(f"v_and_b32 v{vT+4}, 1, v{vLANE}"); A(f"v_lshl_add_u32 v{vWOFF}, v{vT+4}, 4, v{vWOFF}")
        A(f"s_mul_i32 {sOFF}, {sW}, {rown(1)*7168}"); A(f"s_lshl_b32 {sT2}, {sFC}, 8"); A(f"s_add_u32 {sOFF}, {sOFF}, {sT2}")
        A(f"s_lshl_b32 {sT2}, {sFR}, 5"); A(f"s_add_u32 {sOFF}, {sOFF}, {sT2}")
    elif hs & 2:
        A(f"v_lshrrev_b32 v{vWOFF}, 3, v{vLANE}"); A(f"v_mul_u32_u24 v{vWOFF}, {4*7168}, v{vWOFF}"); A(f"v_and_b32 v{vT+4}, 7, v{vLANE}"); A(f"v_lshl_add_u32 v{vWOFF}, v{vT+4}, 4, v{vWOFF}")
        A(f"s_lshr_b32 {sOFF}, {sFR}, 1"); A(f"s_lshl_b32 {sOFF}, {sOFF}, 8"); A(f"s_add_u32 {sOFF}, {sOFF}, {sW}")
        A(f"s_mul_i32 {sOFF}, {sOFF}, 7168"); A(f"s_lshl_b32 {sT2}, {sFC}, 8"); A(f"s_add_u32 {sOFF}, {sOFF}, {sT2}")
        A(f"s_and_b32 {sT2}, {sFR}, 1"); A(f"s_lshl_b32 {sT2}, {sT2}, 7"); A(f"s_add_u32 {sOFF}, {sOFF}, {sT2}")
        rown = rown2
    else:
        A(f"v_mul_u32_u24 v{vWOFF}, {GROW*7168}, v{vT+3}"); A(f"v_lshl_add_u32 v{vWOFF}, v{vT+2}, 4, v{vWOFF}")
        A(f"s_lshl_b32 {sOFF}, {sFR}, 7"); A(f"s_add_u32 {sOFF}, {sOFF}, {sW}")
        A(f"s_mul_i32 {sOFF}, {sOFF}, 7168"); A(f"s_lshl_b32 {sT2}, {sFC}, 8"); A(f"s_add_u32 {sOFF}, {sOFF}, {sT2}")
    mk_srd(SRD_K, P_K, 1 << 29); mk_srd(SRD_V, P_V, 1 << 29)
    if len(pat) == 10: pat += "ABCDEF"
    bits = {c: [8+k for k, ch in enumerate(pat) if ch == c] for c in "gw"}
    bits["i"] = [8+pat.index(c) for c in "ABCDEF"]
    bits["j"] = [8+pat.index(c) for c in "0123"]
    bits["s"] = [8+pat.index(c) for c in "abc"]
    assert len(pat) == 16 and sorted(sum(bits.values(), [])) == list(range(8, 24))
    runs = []
    for k, b in enumerate(bits["i"]):
        if runs and runs[-1][1] + runs[-1][2] == b: runs[-1][2] += 1
        else: runs.append([k, b, 1])
    def dep(v, c): return sum(((v >> k) & 1) << b for k, b in enumerate(bits[c]))
    C(f"key order inside a head (address bits 8..23): {pat}  (w wave, abc split, g lane group, 0123 load, A-F unit)")
    if bits["s"] == [bits["s"][0] + k for k in range(3)]:
        A(f"s_lshl_b32 {sNEXT}, {sS}, {bits['s'][0]}")
    else:
        A(f"s_mov_b32 {sNEXT}, 0")
        for k in range(2 if loc else 3):
            A(f"s_lshr_b32 {sT1}, {sS}, {k}"); A(f"s_and_b32 {sT1}, {sT1}, 1"); A(f"s_lshl_b32 {sT1}, {sT1}, {bits['s'][k]}"); A(f"s_or_b32 {sNEXT}, {sNEXT}, {sT1}")
    A(f"s_lshl_b32 {sT1}, {sW}, {bits['w'][0]}"); A(f"s_or_b32 {sNEXT}, {sNEXT}, {sT1}")
    A(f"v_lshl_add_u32 v{vJ}, v{vT+2}, 4, {sNEXT}")
    sNV = "s78"
    A(f"s_lshl_b32 {sNEXT}, {sH}, 24")
    if loc:
        assert bits["s"][2] == 13
        A(f"s_getreg_b32 s79, hwreg(HW_REG_XCC_ID)"); A(f"s_lshr_b32 s79, s79, 2"); A(f"s_lshr_b32 {sT2}, {sH}, 4"); A(f"s_xor_b32 s79, s79, {sT2}")
        A(f"s_xor_b32 s79, s79, {loc[0]}"); A(f"s_and_b32 s79, s79, 1"); A(f"s_lshl_b32 s79, s79, 13"); A(f"s_or_b32 {sNEXT}, {sNEXT}, s79")
    A(f"s_add_u32 {sNV}, {sNEXT}, {dep(8, 'j')}")
    for k in range(2):
        A(f"v_bfe_u32 v{vJ+1}, v{vLANE}, {4+k}, 1"); A(f"v_mul_u32_u24 v{vJ+1}, {(1 << bits['g'][k]) | gx[k]}, v{vJ+1}"); A(f"v_xor_b32 v{vJ}, v{vJ}, v{vJ+1}")
    for j in range(1, 8): A(f"v_xor_b32 v{vJ+j}, {dep(j, 'j')}, v{vJ}")
    def slot(n): return vR + 4*(n % N2)
    def kv_load(n, t=SRD_K):
        A(f"buffer_load_dwordx4 v[{slot(n)}:{slot(n)+3}], v{vJ + n % U}, {srd(t)}, {sNEXT if n < U else sNV} offen nt")
    def gu_load(n):
        if gseq:
            A(f"buffer_load_dwordx4 v[{slot(n)}:{slot(n)+3}], v{vWOFF}, {srd(SRD_A if n < 16 else SRD_B)}, {sOFF} offen nt")
            d = (rown(2*((n+1) % 16)) - rown(2*(n % 16)))*7168
            if n < 31: A(f"s_add_u32 {sOFF}, {sOFF}, {d}" if d > 0 else f"s_sub_u32 {sOFF}, {sOFF}, {-d}")
            return
        A(f"buffer_load_dwordx4 v[{slot(n)}:{slot(n)+3}], v{vWOFF}, {srd(SRD_A if n % 2 == 0 else SRD_B)}, {sOFF} offen nt")
        if n % 2 and n < 31: A(f"s_add_u32 {sOFF}, {sOFF}, {(rown(n+1) - rown(n-1))*7168}")
    if not nob0: A("s_barrier")
    A(f"s_cmp_ge_u32 {sFC}, 28"); A("s_cbranch_scc1 L_noffn")
    if DG0 is None: DG0 = DG
    if DG1 is None: DG1 = DG
    for n in range(DG0): gu_load(n)
    zero4(vD); zero4(vD2)
    A(f"s_waitcnt vmcnt({DG0})")
    layernorm()
    for n in range(DG0, DG1): gu_load(n)
    A(f"s_cmp_eq_u32 {sW}, 1"); A(f"s_cselect_b64 vcc, -1, 0")
    if hs == 3:
        assert gseq
        A(f"v_cndmask_b32 v{vPX}, v{vPX}, v{vPX+1}, vcc"); A(f"v_cndmask_b32 v{vPX+2}, v{vPX+2}, v{vPX+3}, vcc")
    else: A(f"v_cndmask_b32 v{vPK}, v{vPK}, v{vPK1}, vcc")
    nop(2)
    gi = DG1
    for n in range(2*NJ):
        ii, mat = (n % 16, n // 16) if gseq else (n // 2, n % 2)
        if hs == 3: build_AH(vPX + 2*(ii & 1), ii >> 1, vA)
        elif gseq or mat == 0: build_A(vPK, ii)
        A(f"s_waitcnt vmcnt({gi - n - 1})")
        if gseq or mat == 0: nop(1)
        mfma(vD if mat == 0 else vD2, slot(n))
        while gi - (n+1) < DG and gi < 2*NJ + N2:
            if gi < 2*NJ: gu_load(gi)
            else: kv_load(gi - 2*NJ)
            gi += 1
    while gi < 2*NJ + N2: kv_load(gi - 2*NJ); gi += 1
    A(f"s_lshl_b32 {sT1}, {sW}, 9"); A(f"v_add_u32 v{vT}, {sT1}, v{vCQH if hs == 3 else vCQ}")
    nop(12)
    if hs == 3: A("s_mov_b32 exec_lo, 0x00ff00ff"); A("s_mov_b32 exec_hi, 0xff00ff00")
    else: A("s_mov_b32 exec_hi, 0")
    A(f"ds_write_b128 v{vT}, v[{vD}:{vD+3}] offset:{L_GU}")
    A(f"ds_write_b128 v{vT}, v[{vD2}:{vD2+3}] offset:{L_GU + W*512}")
    A("s_mov_b64 exec, -1")
    A("s_branch L_kvstart")
    LBL("L_noffn")
    for n in range(N2): kv_load(n)
    A(f"s_waitcnt vmcnt({N2})")
    LBL("L_kvstart")
    zero4(vD)
    A(f"v_mov_b32 v{vM}, {f32(-3.0e38)}"); A(f"v_mov_b32 v{vL}, 0")
    A(f"s_mov_b32 s72, 0xcccccccc"); A(f"s_mov_b32 s73, 0xcccccccc")
    A(f"s_mov_b32 {sSCALE}, {f32(128**-0.5)}"); A(f"s_mov_b32 {sLOG2E}, {f32(1.4426950408889634)}")
    A(f"v_and_b32 v{vT}, 15, v{vLANE}"); A(f"v_lshlrev_b32 v{vT}, 4, v{vT}")
    C("final weight tile of this wave: wave 0 -> w_down(cg,rg), wave 1 -> wo(h,s)")
    A(f"s_cmp_lt_u32 {sDC}, 28"); A(f"s_cselect_b32 {sT3}, {3584*1024*2}, 0"); A(f"s_add_u32 {sT2}, {sDC}, 32")
    A(f"s_cmp_eq_u32 {sW}, 0")
    A(f"s_cselect_b32 s{SRD_A}, s{P_WD}, s{P_WO}"); A(f"s_cselect_b32 s{SRD_A+1}, s{P_WD+1}, s{P_WO+1}")
    A(f"s_cselect_b32 s{SRD_A+2}, {sT3}, {4096*1024*2}")
    A(f"s_cselect_b32 {sT0}, {sDC}, {sH}"); A(f"s_cselect_b32 {sT1}, {sDR}, {sS}"); A(f"s_cselect_b32 {sT2}, {sT2}, {sH}")
    sHALF = sTAG
    if wop == 2:
        A(f"s_lshr_b32 {sT3}, {sT0}, 4"); A(f"s_xor_b32 {sT3}, {sT3}, {sW}"); A(f"s_and_b32 {sT3}, {sT3}, 1")
    elif wop: A(f"s_mov_b32 {sT3}, 0")
    A(f"s_lshl_b32 {sOFF}, {sT0}, 18"); A(f"s_lshl_b32 {sT0}, {sT1}, 8"); A(f"s_add_u32 {sOFF}, {sOFF}, {sT0}")
    if wop:
        A(f"s_lshl_b32 {sT0}, {sT3}, 17"); A(f"s_add_u32 {sOFF}, {sOFF}, {sT0}")
        A(f"s_lshl_b32 {sT0}, {sT3}, 18"); A(f"s_sub_u32 {sHALF}, {(64-14)*2048}, {sT0}")
    A(f"s_lshl_b32 {sBASE}, {sT1}, 6"); A(f"s_add_u32 {sBASE}, {sBASE}, {sT2}"); A(f"s_lshl_b32 {sBASE}, {sBASE}, 9"); A(f"s_add_u32 {sBASE}, {sBASE}, {WS_FO}")
    if wop:
        A(f"v_lshrrev_b32 v{vT+5}, 4, v{vLANE}"); A(f"v_lshl_add_u32 v{vWOFF}, v{vT+5}, 15, v{vT}")
        A(f"v_bfe_u32 v{vT+4}, v{vLANE}, 3, 1"); A(f"v_xor_b32 v{vT+4}, {sT3}, v{vT+4}"); A(f"v_lshlrev_b32 v{vT+4}, 5, v{vT+4}")
        A(f"v_lshl_add_u32 v{vT+4}, v{vT+5}, 3, v{vT+4}"); A(f"v_and_b32 v{vT+5}, 7, v{vLANE}"); A(f"v_add_u32 v{vT+4}, v{vT+4}, v{vT+5}")
    else:
        A(f"v_bfe_u32 v{vT+4}, v{vLANE}, 4, 1"); A(f"v_lshrrev_b32 v{vT+5}, 5, v{vLANE}")
        A(f"v_lshlrev_b32 v{vT+4}, 17, v{vT+4}"); A(f"v_lshl_add_u32 v{vT+4}, v{vT+5}, 12, v{vT+4}")
        A(f"v_add_u32 v{vWOFF}, v{vT}, v{vT+4}")
    vCTL, vTSA, vTSV, vW4, vVA, vOA, vLA = vXS, vXS+2, vXS+3, vXS+4, vXS+5, vXS+6, vXS+7
    vONE = vCA
    vSA, vTN = vTK, vPK1
    A(f"s_lshl_b32 {sT0}, {sW}, 14"); A(f"v_lshl_add_u32 v{vSA}, v{vLANE}, 2, {sT0}")
    A(f"s_mov_b32 s{SRD_B}, 0xaaaaaaaa"); A(f"s_mov_b32 s{SRD_B+1}, 0xaaaaaaaa")
    sMASK0 = f"s[{SRD_B}:{SRD_B+1}]"
    A(f"v_mov_b32 v{vONE}, 1")
    A(f"s_mov_b32 {sCUR}, 0"); A(f"s_mov_b32 {sSTEP}, 0"); A(f"s_mov_b32 {sCNT}, {0x10000000 if uj else 0}")
    A(f"s_mov_b32 {sN}, 0"); A(f"s_mul_i32 {sT0}, {sW}, 640"); A(f"v_mov_b32 v{vTSA}, {sT0}")
    A(f"s_lshl_b32 {sT0}, {sW}, 2"); A(f"v_mov_b32 v{vW4}, {sT0}")
    A(f"s_lshl_b32 {sT0}, {sW}, 9"); A(f"v_lshl_add_u32 v{vVA}, v{vT+4 if wop else vLANE}, 3, {sT0}"); A(f"v_add_u32 v{vOA}, {sT0}, v{vCQ}")
    A(f"s_lshl_b32 {sT0}, {sW}, 5"); A(f"v_lshrrev_b32 v{vLA}, 4, v{vLANE}"); A(f"v_lshl_add_u32 v{vLA}, v{vLA}, 2, {sT0}")
    stamp(1, 0)
    A("s_waitcnt lgkmcnt(0)")
    A("s_barrier")
    A(f"ds_read_b128 v[{vQ}:{vQ+3}], v{vT} offset:{L_Q}")
    A(f"ds_read_b32 v{vTG}, v{vZ} offset:{L_TAG}")
    stamp(2, 0)
    A("s_waitcnt lgkmcnt(0)")
    if stamps: A("s_mov_b32 s98, 0"); A("s_mov_b32 s99, 0"); A(f"v_mov_b32 v{vTR}, 0")

    rare = []
    def trace():
        if stamps:
            A("s_memrealtime s[94:95]"); A("s_and_b32 m0, s98, 63" if fine else "s_lshr_b32 m0, s98, 2"); A("s_add_u32 s98, s98, 1"); A("s_waitcnt lgkmcnt(0)")
            A(f"v_writelane_b32 v{vTR}, s94, m0")
    def sample():
        A(f"s_memrealtime {sCLK}"); A(f"ds_read_b64 v[{vCTL}:{vCTL+1}], v{vZ} offset:{L_CT}")
    vPP = vR + 64
    def kstep(j):
        k = slot(j)
        A(f"v_dot2_f32_bf16 v{vPP+j}, v{k}, v{vQ}, 0")
        for r in range(1, 4): A(f"v_dot2_f32_bf16 v{vPP+j}, v{k+r}, v{vQ+r}, v{vPP+j}")
    def kpost(j):
        P = vPP
        if j % 2 == 1:
            dpp("v_add_f32", P+j-1, P+j-1, P+j-1, "row_ror:8", bm="0x3"); nop(2)
            dpp("v_add_f32", P+j-1, P+j, P+j, "row_ror:8", bm="0xc")
        if j % 4 == 3:
            a = j - 3
            dpp("v_add_f32", P+a, P+a, P+a, "row_half_mirror", bm="0x5"); nop(1)
            dpp("v_add_f32", P+a, P+a+2, P+a+2, "row_half_mirror", bm="0xa"); nop(2)
            dpp("v_add_f32", P+a, P+a, P+a, "quad_perm:[2,3,0,1]")
        if j % 8 == 7:
            a = j - 7
            A(f"v_cndmask_b32_e64 v{P+a}, v{P+a}, v{P+a+4}, {sMASK}"); nop(2)
            dpp("v_add_f32", P+a, P+a, P+a, "quad_perm:[1,0,3,2]")
        if j == 15:
            A(f"v_cndmask_b32_e64 v{vP}, v{P}, v{P+8}, {sMASK0}")
            bf16r(vP, vP)
            A(f"v_mul_f32 v{vP}, {sSCALE}, v{vP}")
            bf16r(vP, vP)
            A(f"v_mul_f32 v{vP}, {sLOG2E}, v{vP}")
            A(f"ds_write_b32 v{vSA}, v{vP} offset:{L_S}")
            A(f"v_max_f32 v{vM}, v{vM}, v{vP}")
            A(f"v_add_u32 v{vSA}, 256, v{vSA}")
    def make_p():
        A("s_waitcnt lgkmcnt(0)")
        A(f"v_sub_f32 v{vTN}, v{vTN}, v{vM}")
        A(f"v_exp_f32 v{vTN}, v{vTN}")
        nop(1)
        A(f"v_cvt_pk_bf16_f32 v{vPK}, v{vTN}, v{vTN}")
        A(f"v_add_f32 v{vL}, v{vL}, v{vTN}")
        nop(1)
    WSL = [16 + (4 + m) % 16 for m in range(16)] + list(range(16))
    def wreg(m): return vR + 4*WSL[m]
    OFFS_WO = [(4*(n//2) + n % 2)*2048 for n in range(32)] if not wop else [((n & 15) + 64*(n >> 4))*2048 for n in range(32)]
    wst = {"m": 0, "cur": 0}
    def w_load():
        m = wst["m"]
        if wop and m == 16:
            assert OFFS_WO[m] - wst["cur"] == (64-14)*2048
            A(f"s_add_u32 {sOFF}, {sOFF}, {sHALF}"); wst["cur"] = OFFS_WO[m]
        elif OFFS_WO[m] - wst["cur"] >= 4096:
            A(f"s_add_u32 {sOFF}, {sOFF}, {OFFS_WO[m]-wst['cur']}"); wst["cur"] = OFFS_WO[m]
        A(f"buffer_load_dwordx4 v[{wreg(m)}:{wreg(m)+3}], v{vWOFF}, {srd(SRD_A)}, {sOFF} offen offset:{OFFS_WO[m]-wst['cur']} nt")
        wst["m"] += 1
    def unit(old, new, bst=0):
        last = new == "W"
        q = [("o", n) for n in range(K0, N2)]
        st = {"i": 0}
        early_w = WE if (old, new) == ("K", "V") else 0
        def issue():
            if st.get("w", 0) < early_w:
                w_load(); q.append(("w", st.get("w", 0))); st["w"] = st.get("w", 0) + 1
                return
            if last and (wst["m"] >= 32 or (WSL[wst["m"]] < 16 and ("o", WSL[wst["m"]]) in q)): return
            if last: w_load()
            else: kv_load(st["i"], SRD_K if new == "K" else SRD_V)
            q.append(("n", st["i"])); st["i"] += 1
        for _ in range(bst): issue()
        if new == "V" and old == "V":
            A(f"ds_read_b32 v{vTN}, v{vSA} offset:{L_S}"); A(f"v_add_u32 v{vSA}, 256, v{vSA}")
        steps = [("o", n) for n in range(K0, N2)] + [("w", n) for n in range(early_w)] + ([] if last else [("n", n) for n in range(K0)])
        for si, key in enumerate(steps):
            n = key[1]
            if key[0] == "w":
                pos = q.index(key)
                A(f"s_waitcnt vmcnt({len(q) - 1 - pos})")
                del q[:pos+1]
                issue()
                continue
            kind = old if key[0] == "o" else new
            if not last and key == steps[-1]: sample()
            if key == ("n", 0):
                trace()
                if new == "V" and old == "K":
                    C("end of the K pass: true maximum over this wave's keys")
                    A(f"v_subrev_u32 v{vSA}, 16384, v{vSA}")
                    A(f"ds_read_b32 v{vTN}, v{vSA} offset:{L_S}"); A(f"v_add_u32 v{vSA}, 256, v{vSA}")
                    wave_reduce("v_max_f32", vM)
                if new == "V": make_p()
            pos = q.index(key)
            if kind == "V": build_A(vPK, 4*[0, 2, 1, 3][n & 3] + 2*((n >> 2) & 1) + (n >> 3))
            A(f"s_waitcnt vmcnt({len(q) - 1 - pos})")
            del q[:pos+1]
            if kind == "K": kstep(n)
            else: nop(1); mfma(vD, slot(n))
            if st["i"] < N2 and (not last or len(q) < DW): issue()
            if hb is not None and si == hb and bst == 0 and not last: issue()
            if kind == "K": kpost(n)
        if not last:
            assert st["i"] == N2 and q == [("n", n) for n in range(K0, N2)]
        return len(q)
    BN = bn if bn else K0
    C("first steps of unit 0 (all 16 loads already issued)")
    trace()
    for n in range(K0):
        if n == K0-1: sample()
        A(f"s_waitcnt vmcnt({N2-1-n})"); kstep(n); kpost(n)
    A("s_branch L_aft")
    LBL("L_KS")
    C(f"K pass, normal unit (look-ahead {D} loads)")
    unit("K", "K")
    LBL("L_aft")
    A(f"s_add_u32 {sN}, {sN}, 1"); A(f"v_add_u32 v{vTSA}, 4, v{vTSA}")
    A(f"s_lshl_b32 {sNEXT}, {sH}, 24")
    for k, b, ln in runs:
        A(f"s_bfe_u32 {sT0}, {sN}, {k | (ln << 16)}"); A(f"s_lshl_b32 {sT0}, {sT0}, {b}"); A(f"s_or_b32 {sNEXT}, {sNEXT}, {sT0}")
    if loc:
        A(f"s_lshr_b32 {sT0}, {sNEXT}, 8"); A(f"s_and_b32 {sT0}, {sT0}, 0x2000"); A(f"s_xor_b32 {sT0}, {sT0}, s79")
        if loc[1]: A(f"s_lshl_b32 {sT1}, {sN}, 7"); A(f"s_and_b32 {sT1}, {sT1}, 0x2000"); A(f"s_xor_b32 {sT0}, {sT0}, {sT1}")
        A(f"s_or_b32 {sNEXT}, {sNEXT}, {sT0}")
    A(f"s_add_u32 {sNV}, {sNEXT}, {dep(8, 'j')}")
    A("s_waitcnt lgkmcnt(0)")
    A(f"v_readfirstlane_b32 {sT0}, v{vCTL}"); A(f"v_readfirstlane_b32 {sT1}, v{vCTL+1}")
    A(f"v_or_b32 v{vTSV}, {sCLKlo}, v{vONE}"); A(f"ds_write_b32 v{vTSA}, v{vTSV} offset:{L_TS}")
    sOFS, sTG0, sPL = sCUR, sSTEP, sCNT
    A(f"s_mul_i32 {sT1}, {sT1}, {sN}"); A(f"s_add_u32 {sT2}, {sT0}, {sT1}")
    A(f"s_lshl_b32 {sT1}, {sCLKlo}, 4"); A(f"s_sub_u32 {sFL}, {sT1}, {sT2}")
    if uj:
        A(f"s_cmp_eq_u32 {sT0}, {sTG0}"); A(f"s_cselect_b32 {sOFS}, {sOFS}, 0"); A(f"s_mov_b32 {sTG0}, {sT0}")
        A(f"s_sub_u32 {sFL}, {sFL}, {sOFS}")
        A(f"s_sub_u32 {sT1}, {sFL}, {sPL}")
        if jfix:
            A(f"s_cmp_lt_i32 {sT1}, {400*16}"); A(f"s_cselect_b32 {sT2}, {jfix*16}, {sT1}")
            A(f"s_cmp_gt_i32 {sT1}, {jump*16}"); A(f"s_cselect_b32 {sT1}, {sT2}, 0")
        else:
            A(f"s_cmp_gt_i32 {sT1}, {jump*16}"); A(f"s_cselect_b32 {sT1}, {sT1}, 0")
        A(f"s_add_u32 {sOFS}, {sOFS}, {sT1}"); A(f"s_sub_u32 {sFL}, {sFL}, {sT1}"); A(f"s_mov_b32 {sPL}, {sFL}")
    else:
        A(f"s_cmp_eq_u32 {sT0}, {sTG0}"); A(f"s_cselect_b32 {sOFS}, {sOFS}, 0"); A(f"s_cselect_b32 {sPL}, {sPL}, {sFL}")
        A(f"s_mov_b32 {sTG0}, {sT0}")
        A(f"s_sub_u32 {sT1}, {sFL}, {sPL}"); A(f"s_mov_b32 {sPL}, {sFL}")
        if jfix:
            A(f"s_cmp_lt_i32 {sT1}, {400*16}"); A(f"s_cselect_b32 {sT2}, {jfix*16}, {sT1}")
            A(f"s_cmp_gt_i32 {sT1}, {jump*16}"); A(f"s_cselect_b32 {sT1}, {sT2}, 0"); A(f"s_add_u32 {sOFS}, {sOFS}, {sT1}")
        else:
            A(f"s_cmp_gt_i32 {sT1}, {jump*16}"); A(f"s_cselect_b32 {sT1}, {sT1}, 0"); A(f"s_add_u32 {sOFS}, {sOFS}, {sT1}")
        A(f"s_sub_u32 {sFL}, {sFL}, {sOFS}")
    A(f"s_cmp_ge_u32 {sN}, 64"); A("s_cbranch_scc1 L_vsel")
    A(f"s_cmp_lt_i32 {sFL}, 0"); A("s_cbranch_scc1 L_KS")
    C("behind the common line: same unit with a longer look-ahead")
    A(f"s_add_u32 {sOFS}, {sOFS}, {int(leak*16)}")
    if stamps: A("s_add_u32 s99, s99, 1")
    unit("K", "K", bst=BN)
    A("s_branch L_aft")
    LBL("L_vsel")
    A(f"s_and_b32 {sT0}, {sN}, 63"); A("s_cbranch_scc0 L_edge")
    if endb:
        A(f"s_cmp_ge_u32 {sN}, {endb[0]}"); A(f"s_cselect_b32 {sT0}, {-endb[1]*16}, 0")
        A(f"s_cmp_lt_i32 {sFL}, {sT0}"); A("s_cbranch_scc0 L_VB")
    else:
        A(f"s_cmp_lt_i32 {sFL}, 0"); A("s_cbranch_scc0 L_VB")
    C("V pass, normal unit")
    unit("V", "V")
    A("s_branch L_aft")
    LBL("L_VB")
    A(f"s_add_u32 {sOFS}, {sOFS}, {int(leak*16)}")
    if stamps: A("s_add_u32 s99, s99, 1")
    unit("V", "V", bst=BN)
    A("s_branch L_aft")
    LBL("L_edge")
    A(f"s_cmp_eq_u32 {sN}, {NT}"); A("s_cbranch_scc1 L_last")
    C("K -> V transition")
    if WE: A(f"s_add_u32 {sOFS}, {sOFS}, {WE*100}")
    unit("K", "V", bst=xb)
    A("s_branch L_aft")
    LBL("L_last")
    C("last unit; the ring continues into this wave's final weight tile")
    def put_ml():
        dpp("v_add_f32", vL, vL, vL, "quad_perm:[1,0,3,2]"); nop(2)
        dpp("v_add_f32", vL, vL, vL, "quad_perm:[2,3,0,1]"); nop(2)
        dpp("v_add_f32", vL, vL, vL, "row_half_mirror"); nop(2)
        dpp("v_add_f32", vL, vL, vL, "row_mirror")
        A("s_mov_b32 exec_lo, 0x00010001"); A("s_mov_b32 exec_hi, 0x00010001")
        A(f"ds_write_b32 v{vLA}, v{vL} offset:{L_ML}")
        A(f"ds_write_b32 v{vLA}, v{vM} offset:{L_ML+16}")
    if pre:
        put_ml()
        A(f"ds_write_b32 v{vW4}, v{vF8} offset:{L_MLF}")
        A("s_mov_b64 exec, -1")
    nq = unit("V", "W")
    stamp(3, 0)
    if pre: nop(10)
    else: put_ml()
    A("s_mov_b32 exec_lo, -1"); A("s_mov_b32 exec_hi, 0")
    A(f"ds_write_b128 v{vOA}, v[{vD}:{vD+3}] offset:{L_O}")
    A(f"ds_write_b32 v{vW4}, v{vF8} offset:{L_DONE}")
    A("s_mov_b64 exec, -1")
    A(f"s_cmp_eq_u32 s{SRD_A+2}, 0"); A("s_cbranch_scc1 L_sdone")
    def rest(d, nq):
        while wst["m"] < 32:
            if nq >= d: A(f"s_waitcnt vmcnt({d-1})"); nq = d-1
            w_load(); nq += 1
        return nq
    if DWa:
        sv = dict(wst)
        A(f"s_cmp_lt_i32 {sFL}, {DWa[1]*16}"); A("s_cbranch_scc1 L_early")
        n1 = rest(DWa[0], nq)
        A("s_branch L_wdone")
        LBL("L_early")
        wst.update(sv)
        nq = max(n1, rest(DW, nq))
        LBL("L_wdone")
    else:
        nq = rest(DW, nq)
    stamp(5, 0)
    def rd_v():
        A(f"ds_read_b64 v[{vPK}:{vPK+1}], v{vVA} offset:{L_V}")
        if yloc: A(f"ds_read_b32 v{vT+1}, v{vZ} offset:{L_CF}")
    lds_wait("V", vW4, [L_VF], vT, 0, extra=rd_v if fuse else None)
    stamp(6, 0)
    if not fuse:
        rd_v()
        A("s_waitcnt lgkmcnt(0)")
    gemv(wreg, nq)
    if not yloc: publish_D(sBASE, vF8, fst)
    else:
        A(f"v_readfirstlane_b32 {sT0}, v{vT+1}"); A(f"v_mov_b32 v{vT+2}, 0x100")
        nop(10)
        tag4(vD, vF8)
        A(f"v_bfi_b32 v{vD}, v{vT+2}, v{vT+1}, v{vD}")
        A("s_mov_b32 exec_hi, 0")
        A(f"s_cmp_lg_u32 {sT0}, 0"); A("s_cbranch_scc1 L_pubfar")
        A(f"buffer_store_dwordx4 v[{vD}:{vD+3}], v{vCQ}, {srd(SRD_WS)}, {sBASE} offen")
        A("s_branch L_pubdone")
        LBL("L_pubfar")
        A(f"buffer_store_dwordx4 v[{vD}:{vD+3}], v{vCQ}, {srd(SRD_WS)}, {sBASE} offen sc1")
        LBL("L_pubdone")
        A("s_mov_b32 exec_hi, -1")
    if fwait: A(f"ds_write_b32 v{vW4}, v{vF8} offset:{L_PUB}")
    LBL("L_sdone")
    stamp(7, 0)
    if stamps:
        A(f"s_memrealtime s[{sST+10}:{sST+11}]" if False else "s_nop 0")
        A(f"s_mul_i32 {sT0}, s2, {W+1}"); A(f"s_add_u32 {sT0}, {sT0}, {sW}"); A(f"s_lshl_b32 {sT0}, {sT0}, 8"); A(f"s_add_u32 {sT0}, {sT0}, {WS_DBG + 0x80000}")
        A(f"v_lshlrev_b32 v{vT}, 2, v{vLANE}")
        A("s_sleep 127"); A("s_sleep 127"); A("s_sleep 127")
        A(f"buffer_store_dword v{vTR}, v{vT}, {srd(SRD_WS)}, {sT0} offen")
        A(f"s_mov_b32 s{sST+8}, s98"); A(f"s_mov_b32 s{sST+2}, s99")
    stamp_store(8)
    A("s_endpgm")
    LBL("L_codeend")
    L.append('.section .rodata,"a"'); L.append(".p2align 6"); L.append(f".amdhsa_kernel {KN}")
    A(f".amdhsa_next_free_vgpr {NV}"); A(f".amdhsa_next_free_sgpr {102 if stamps else 80}"); A(f".amdhsa_accum_offset {(NV+3)//4*4}")
    A(".amdhsa_group_segment_fixed_size 0"); A(".amdhsa_kernarg_size 96"); A(".amdhsa_user_sgpr_count 2")
    A(".amdhsa_user_sgpr_kernarg_segment_ptr 1"); A(".amdhsa_system_sgpr_workgroup_id_x 1")
    A(".amdhsa_float_denorm_mode_32 3")
    L.append(".end_amdhsa_kernel")
    open(name, "w").write("\n".join(L) + "\n")

DOC = """;
;
;
; waits for the clock, and the arithmetic and the output do not depend on it."""

if __name__ == "__main__":
    import subprocess
    names = []
    cfgs = eval(sys.argv[1])
    for c in cfgs:
        nm = "m_v3b_" + "_".join(f"{k}{str(v).replace(' ','').replace('(','').replace(')','').replace('[','').replace(']','').replace(',','x')}" for k, v in c.items()) + ".s"
        gen(nm, **c); names.append(nm)
    subprocess.check_call(["python3", "build.py"] + names)
    print(" ".join(n[:-2]+".co" for n in names))
```
